```python
import torch

def _softmax(x, axis=-1):
    return torch.softmax(x, dim=axis)
def _gelu(x):
    return torch.nn.functional.gelu(x, approximate="tanh")
def _silu(x):
    return torch.nn.functional.silu(x)
def _sigmoid(x):
    return torch.sigmoid(x)
def _layernorm(x, axis=-1, eps=1e-5):
    m = x.mean(dim=axis, keepdim=True)
    v = x.var(dim=axis, keepdim=True, unbiased=False)
    return (x - m) / torch.sqrt(v + eps)
def _scatter_add(tgt, idx, src, axis=0):
    return tgt.clone().index_add_(axis, idx, src)
def _segment_sum(src, seg, n):
    out = torch.zeros((n,) + src.shape[1:], dtype=src.dtype)
    return out.index_add_(0, seg, src)
def _pad(x, pw):
    flat = tuple(v for pair in reversed(pw) for v in pair)
    return torch.nn.functional.pad(x, flat)

kernel_name = 'gated_mix__compressed_kv_cla__ssm_conv_h3__prompt'

def setup_inputs():

    _w = (lambda a: (lambda t: t.to(torch.bfloat16) if t.is_floating_point() else t)(torch.as_tensor(a)))
    def _A_setup():
        B, H, Sq, Sk, D, M = 1, 32, 2048, 2048, 128, 640
        Dc = 4 * D
        return {
            "x": _w((lambda *s: torch.randn(*s, dtype=torch.bfloat16) * 0.05)(B, Sq, M)),
            "c_kv": _w((lambda *s: torch.randn(*s, dtype=torch.bfloat16) * 0.4)(B, Sk, Dc)),
            "w_q": _w((lambda *s: torch.randn(*s, dtype=torch.bfloat16) * 6.4)(M, H, D) * (M ** -0.5)),
            "w_uk": _w((lambda *s: torch.randn(*s, dtype=torch.bfloat16) * 6.4)(Dc, H, D) * (Dc ** -0.5)),
            "w_uv": _w((lambda *s: torch.randn(*s, dtype=torch.bfloat16) * 0.4)(Dc, H, D) * (Dc ** -0.5)),
            "w_o": _w((lambda *s: torch.randn(*s, dtype=torch.bfloat16) * 0.4)(H, D, M) * ((H * D) ** -0.5)),
        }
    _A_in = _A_setup()

    def _B_setup():
        B, S, D = 1, 2048, 640
        ks = 4
        return {
            "q": _w((lambda *s: torch.randn(*s, dtype=torch.bfloat16) * 0.05)(B, S, D)),
            "k": _w((lambda *s: torch.randn(*s, dtype=torch.bfloat16) * 0.4)(B, S, D)),
            "v": _w((lambda *s: torch.randn(*s, dtype=torch.bfloat16) * 0.4)(B, S, D)),
            "shift_k": _w((lambda *s: torch.randn(*s, dtype=torch.bfloat16) * 0.4)(D, ks) * 0.5),
            "ssm_k": _w((lambda *s: torch.randn(*s, dtype=torch.bfloat16) * 0.8)(D, S) * (1.0 / S ** 0.5)),
            "ssm_D": _w((lambda *s: torch.randn(*s, dtype=torch.bfloat16) * 0.4)(D)),
        }
    _B_in = _B_setup()

    return {
        "A_x": _A_in["x"],
        "A_c_kv": _A_in["c_kv"],
        "A_w_q": _A_in["w_q"],
        "A_w_uk": _A_in["w_uk"],
        "A_w_uv": _A_in["w_uv"],
        "A_w_o": _A_in["w_o"],
        "B_q": _B_in["q"],
        "B_k": _B_in["k"],
        "B_v": _B_in["v"],
        "B_shift_k": _B_in["shift_k"],
        "B_ssm_k": _B_in["ssm_k"],
        "B_ssm_D": _B_in["ssm_D"],
        "gate_w": _w((lambda *s: torch.randn(*s, dtype=torch.bfloat16) * 0.05)(640) * 16.0),
    }

def reference(A_x, A_c_kv, A_w_q, A_w_uk, A_w_uv, A_w_o, B_q, B_k, B_v, B_shift_k, B_ssm_k, B_ssm_D, gate_w):
    def _A_ref(x, c_kv, w_q, w_uk, w_uv, w_o):
        B, Sq, M = x.shape[0], x.shape[1], x.shape[2]
        Sk = c_kv.shape[1]
        H, D = w_q.shape[1], w_q.shape[2]
        q = torch.einsum("bqm,mhd->bhqd", x, w_q)
        k = torch.einsum("bkc,chd->bhkd", c_kv, w_uk)
        v = torch.einsum("bkc,chd->bhkd", c_kv, w_uv)
        scores = torch.einsum("bhqd,bhkd->bhqk", q, k) * (D ** -0.5)
        off = Sk - Sq
        qi = torch.arange(Sq)[:, None]
        kj = torch.arange(Sk)[None, :]
        cmask = kj <= (qi + off)
        scores = torch.where(cmask[None, None], scores, -1e9)
        p = _softmax(scores, axis=-1)
        ctx = torch.einsum("bhqk,bhkd->bhqd", p, v)
        return torch.einsum("bhqd,hdm->bqm", ctx, w_o)

    def _B_ref(q, k, v, shift_k, ssm_k, ssm_D):
        B, S, D = q.shape
        ks = shift_k.shape[-1]
        k_pad = _pad(k, ((0, 0), (ks - 1, 0), (0, 0)))
        k_shift = torch.zeros_like(k)
        for t in range(ks):
            k_shift = k_shift + k_pad[:, t:t + S, :] * shift_k[:, ks - 1 - t][None, None, :]
        kv = k_shift * v
        L = 2 * S
        kv_pad = _pad(kv, ((0, 0), (0, S), (0, 0)))
        kf_pad = _pad(ssm_k, ((0, 0), (0, S)))
        kv_f = (lambda x, axes=(-2,-1): torch.fft.rfft2(x.float(), dim=axes))(kv_pad[:, None, :, :], axes=(1, 2))
        kf_f = (lambda x, axes=(-2,-1): torch.fft.rfft2(x.float(), dim=axes))(kf_pad[:, None, :], axes=(1, 2))
        kf_f = (lambda x, *d: x.permute(*d))(kf_f, 1, 2, 0)
        y_f = kv_f * kf_f[None, :, :, :]
        y = (lambda x, s, axes=(-2,-1): torch.fft.irfft2(x, s=s, dim=axes).to(torch.bfloat16))(y_f, (1, L), axes=(1, 2))[:, 0, :S, :]
        y = y + kv * ssm_D[None, None, :]
        return q * y

    x = A_x
    g = _sigmoid((x * gate_w).sum(-1, keepdims=True))
    a = _A_ref(x, A_c_kv, A_w_q, A_w_uk, A_w_uv, A_w_o)
    b = _B_ref(x, B_k, B_v, B_shift_k, B_ssm_k, B_ssm_D)
    return g * a + (1 - g) * b
```

```python
import re

def V(i, n=1):
    return f"v{i}" if n == 1 else f"v[{i}:{i+n-1}]"
def S(i, n=1):
    return f"s{i}" if n == 1 else f"s[{i}:{i+n-1}]"

_reg_re = re.compile(r"^(-|abs\()?([vsa])(\d+)\)?$")
_rng_re = re.compile(r"^([vsa])\[(\d+):(\d+)\]$")

def regs_of(op):
    op = op.strip()
    m = _reg_re.match(op)
    if m:
        return [(m.group(2), int(m.group(3)))]
    m = _rng_re.match(op)
    if m:
        return [(m.group(1), i) for i in range(int(m.group(2)), int(m.group(3)) + 1)]
    if op == "vcc":
        return [("s", "vcc")]
    if op == "exec":
        return [("s", "exec")]
    if op == "m0":
        return [("s", "m0")]
    return []

TRANS = ("v_exp_f32", "v_log_f32", "v_rcp_f32", "v_rsq_f32", "v_sqrt_f32", "v_sin_f32", "v_cos_f32", "v_rcp_iflag_f32")

class Ins:
    def __init__(self, op, ops, mods="", ann=None, comment=""):
        self.op = op; self.ops = list(ops); self.mods = mods; self.ann = ann or {}; self.comment = comment
        self.label = None
        self.classify()
    def text(self):
        if self.op == "label":
            return f"{self.ops[0]}:"
        if self.op == "raw":
            return self.ops[0]
        t = "    " + self.op
        if self.ops:
            t += " " + ", ".join(self.ops)
        if self.mods:
            t += " " + self.mods
        if self.comment:
            t += "    ; " + self.comment
        return t
    def classify(self):
        op = self.op; o = self.ops
        self.w = []; self.r = []
        self.kind = "other"
        R = lambda idxs: [x for i in idxs for x in regs_of(o[i])]
        if op in ("label", "raw"):
            self.kind = op; return
        if op.startswith("v_mfma"):
            self.kind = "mfma"
            self.w = R([0]); self.ra = R([1]); self.rb = R([2]); self.rc = R([3])
            self.r = self.ra + self.rb + self.rc
            self.passes = 8 if "32x32" in op else 4
        elif op.startswith("v_cmp"):
            self.kind = "valu"; self.w = R([0]); self.r = R(range(1, len(o)))
            if op.startswith("v_cmpx"): self.w += [("s", "exec")]
        elif op in ("v_readfirstlane_b32", "v_readlane_b32"):
            self.kind = "valu"; self.w = R([0]); self.r = R(range(1, len(o)))
        elif op.startswith("v_permlane") and "swap" in op:
            self.kind = "valu"; self.w = R([0, 1]); self.r = R([0, 1])
        elif op in ("v_add_co_u32", "v_sub_co_u32", "v_addc_co_u32", "v_subb_co_u32"):
            self.kind = "valu"; self.w = R([0, 1]); self.r = R(range(2, len(o)))
        elif op.startswith("v_"):
            self.kind = "valu"; self.w = R([0]); self.r = R(range(1, len(o)))
            if op.startswith("v_fmac") or op.startswith("v_pk_fmac") or op.startswith("v_dot2c") or op=="v_writelane_b32":
                self.r += self.w
            if "dpp" in self.mods or "row_" in self.mods or "quad_perm" in self.mods or "wave_" in self.mods:
                self.dpp = True
        elif op.startswith("ds_read") or op.startswith("ds_bpermute") or op.startswith("ds_swizzle"):
            self.kind = "ds"; self.w = R([0]); self.r = R(range(1, len(o)))
        elif op.startswith("ds_"):
            self.kind = "ds"; self.r = R(range(len(o)))
        elif op.startswith("buffer_load") or op.startswith("global_load"):
            self.kind = "vmem"
            if " lds" in (" " + self.mods) or "_lds_" in op:
                self.r = R(range(len(o))) + [("s", "m0")]; self.dma = True
            else:
                self.w = R([0]); self.r = R(range(1, len(o)))
        elif op.startswith("buffer_store") or op.startswith("global_store"):
            self.kind = "vmem"; self.r = R(range(len(o))); self.store = True
            self.data = R([0]) if op.startswith("buffer") else R([1])
        elif op.startswith("buffer_atomic") or op.startswith("global_atomic"):
            self.kind = "vmem"; self.r = R(range(len(o)))
            if "sc0" in self.mods: self.w = R([0])
        elif op in ("buffer_wbl2", "buffer_inv"):
            self.kind = "vmem"
        elif op.startswith("s_load") or op.startswith("s_buffer_load") or op in ("s_memtime", "s_memrealtime"):
            self.kind = "smem"; self.w = R([0]); self.r = R(range(1, len(o)))
        elif op.startswith("s_cmp") or op.startswith("s_bitcmp"):
            self.kind = "salu"; self.r = R(range(len(o)))
        elif op in ("s_waitcnt", "s_barrier", "s_nop", "s_endpgm", "s_setprio", "s_sleep", "s_branch") or op.startswith("s_cbranch"):
            self.kind = "ctl"
        elif op.startswith("s_"):
            self.kind = "salu"; self.w = R([0]); self.r = R(range(1, len(o)))
            if op in ("s_addk_i32", "s_mulk_i32"): self.r += self.w
            if "saveexec" in op: self.w += [("s", "exec")]; self.r += [("s", "exec")]
        else:
            raise ValueError("unknown op " + op)
        if op == "v_cndmask_b32" and len(o) == 3:
            self.r += [("s", "vcc")]
    def states(self):
        if self.kind in ("label", "raw"): return 0
        if self.op == "s_nop": return int(self.ops[0]) + 1
        return 1

def required_gap(p, c):
    need = 0
    pw = set(p.w); cr = set(c.r); cw = set(c.w)
    if p.kind == "valu":
        vw = {x for x in pw if x[0] in "va"}
        sw = {x for x in pw if x[0] == "s"}
        if c.kind == "mfma" and vw & cr: need = max(need, 2)
        if c.kind == "mfma" and ("s", "exec") in pw: need = max(need, 4)
        if c.op in ("v_readfirstlane_b32", "v_readlane_b32") and vw & cr: need = max(need, 1)
        if c.op.startswith("v_permlane") and vw & cr: need = max(need, 2)
        if getattr(c, "dpp", False) and vw & cr: need = max(need, 2)
        if p.op in TRANS and c.kind in ("valu",) and c.op not in TRANS and vw & cr: need = max(need, 1)
        if p.op in TRANS and c.kind in ("mfma","vmem","ds") and vw & cr: need = max(need, 2 if c.kind=="mfma" else 1)
        if sw:
            if c.kind == "vmem" and sw & cr: need = max(need, 5)
            if c.kind == "valu" and sw & cr:
                need = max(need, 4 if c.op in ("v_readlane_b32", "v_writelane_b32") else 2)
            if c.kind == "salu" and sw & cr: need = max(need, 1)
            if ("s", "exec") in sw and c.op in ("v_readfirstlane_b32", "v_readlane_b32", "v_writelane_b32"): need = max(need, 4)
            if ("s", "exec") in sw and c.op.startswith("v_permlane"): need = max(need, 4)
            if ("s", "exec") in sw and getattr(c, "dpp", False): need = max(need, 5)
        if ("op_sel" in p.mods or "sdwa" in p.op or "dst_sel" in p.mods) and c.kind == "valu" and vw & (cr | cw): need = max(need, 1)
    if p.kind == "salu" and ("s", "m0") in pw and getattr(c, "dma", False): need = max(need, 1)
    if p.kind == "mfma":
        n = p.passes
        big = {4: 8, 8: 12}[n]; ovl = {4: 6, 8: 10}[n]; war = {4: 3, 8: 7}[n]
        if c.kind == "mfma":
            if pw & (set(c.ra) | set(c.rb)): need = max(need, big)
            if pw & set(c.rc):
                if not (c.rc == p.w and c.passes == p.passes): need = max(need, ovl)
            elif pw & cw:
                need = max(need, ovl)
        elif c.kind in ("valu", "vmem", "ds"):
            if pw & (cr | cw): need = max(need, big)
        if c.kind == "valu" and set(p.rc) & cw: need = max(need, war)
    if getattr(p, "store", False) and ("x4" in p.op or "x3" in p.op):
        if set(p.data) & cw: need = max(need, 2 if c.kind == "valu" else 1)
    return need

MAXGAP = 12

class Asm:
    def __init__(self):
        self.ins = []
        self.nlabel = 0
    def __call__(self, op, *ops, mods="", ann=None, comment=""):
        i = Ins(op, [str(x) for x in ops], mods, ann, comment)
        self.add(i)
        return i
    def add(self, i):
        if i.kind not in ("label", "raw"):
            need_pad = 0; dist = 0
            for p in reversed(self.ins):
                if p.kind in ("label", "raw"):
                    continue
                if p.op in ("s_branch", "s_endpgm"):
                    break
                g = required_gap(p, i)
                if g > dist: need_pad = max(need_pad, g - dist)
                dist += p.states()
                if dist >= MAXGAP: break
            while need_pad > 0:
                n = min(need_pad, 16)
                self.ins.append(Ins("s_nop", [str(n - 1)], comment="auto hazard pad"))
                need_pad -= n
        self.ins.append(i)
    def label(self, name=None):
        if name is None:
            name = f"L{self.nlabel}"; self.nlabel += 1
        self.ins.append(Ins("label", [name]))
        return name
    def newlabel(self, base="L"):
        self.nlabel += 1
        return f"{base}_{self.nlabel}"
    def raw(self, t):
        self.ins.append(Ins("raw", [t]))
    def text(self):
        return "\n".join(i.text() for i in self.ins) + "\n"

M32 = 0xFFFFFFFF
def _imm(tok):
    tok = tok.strip()
    try:
        return int(tok, 0) & M32
    except ValueError:
        return None

class TraceError(Exception):
    pass

def trace(ins, entry, ctx, policy=None, maxlen=3000000):
    labels = {i.ops[0]: n for n, i in enumerate(ins) if i.kind == "label"}
    pc = labels[entry]
    sg = {2: ctx["wg"]}
    scc = None
    out = []
    cnt = {}
    def val(tok):
        r = regs_of(tok)
        if r:
            if len(r) == 1 and r[0][0] == "s": return sg.get(r[0][1])
            return None
        return _imm(tok)
    while True:
        i = ins[pc]; pc += 1
        if i.kind in ("label", "raw"): continue
        out.append(i)
        if len(out) > maxlen: raise TraceError("trace too long")
        op = i.op
        if op == "s_endpgm": return out
        if op == "s_branch": pc = labels[i.ops[0]]; continue
        if op in ("s_cbranch_scc0", "s_cbranch_scc1"):
            if scc is None:
                if policy is None: raise TraceError(f"branch on unknown scc: {i.text()}")
                cnt[id(i)] = cnt.get(id(i), 0) + 1
                if policy(i, cnt[id(i)]): pc = labels[i.ops[0]]
                continue
            if (scc == 1) == (op == "s_cbranch_scc1"): pc = labels[i.ops[0]]
            continue
        if op.startswith("s_cbranch"):
            cnt[id(i)] = cnt.get(id(i), 0) + 1
            if policy and policy(i, cnt[id(i)]): pc = labels[i.ops[0]]
            continue
        if i.kind == "valu" or i.kind == "smem":
            for w in i.w:
                if w[0] == "s": sg[w[1]] = None
            if "val" in i.ann and i.w: sg[i.w[0][1]] = i.ann["val"](ctx) & M32
            continue
        if i.kind != "salu": continue
        o = i.ops
        if op.startswith("s_cmp"):
            a, b = val(o[0]), val(o[1])
            if a is None or b is None: scc = None; continue
            if op.endswith("i32"):
                a = a - (1 << 32) if a >> 31 else a; b = b - (1 << 32) if b >> 31 else b
            c = op.split("_")[2]
            scc = int({"eq": a == b, "lg": a != b, "lt": a < b, "gt": a > b, "le": a <= b, "ge": a >= b}[c])
            continue
        if op.startswith("s_bitcmp"):
            a, b = val(o[0]), val(o[1])
            if a is None or b is None: scc = None; continue
            bit = (a >> (b & 31)) & 1
            scc = int(bit == (1 if "bitcmp1" in op else 0)); continue
        dst = regs_of(o[0])
        if len(dst) != 1:
            for d in dst: sg[d[1]] = None
            if op not in ("s_mov_b64",): scc = None
            continue
        d = dst[0][1]
        a = val(o[1]) if len(o) > 1 else None
        b = val(o[2]) if len(o) > 2 else None
        r = None; nscc = "keep"
        if op in ("s_mov_b32", "s_movk_i32"): r = a
        elif op == "s_addk_i32":
            x = sg.get(d); r = None if x is None else (x + a) & M32; nscc = None
        elif op == "s_cselect_b32":
            r = None if scc is None else (a if scc else b)
        elif a is None or b is None:
            r = None; nscc = None
        elif op in ("s_add_u32",): r = (a + b) & M32; nscc = int(a + b > M32)
        elif op in ("s_add_i32",): r = (a + b) & M32; nscc = None
        elif op in ("s_sub_u32",): r = (a - b) & M32; nscc = int(a < b)
        elif op in ("s_sub_i32",): r = (a - b) & M32; nscc = None
        elif op == "s_mul_i32": r = (a * b) & M32
        elif op == "s_lshl_b32": r = (a << (b & 31)) & M32; nscc = int(r != 0)
        elif op == "s_lshr_b32": r = a >> (b & 31); nscc = int(r != 0)
        elif op == "s_and_b32": r = a & b; nscc = int(r != 0)
        elif op == "s_or_b32": r = a | b; nscc = int(r != 0)
        elif op == "s_xor_b32": r = a ^ b; nscc = int(r != 0)
        elif op == "s_min_u32": r = min(a, b); nscc = None
        elif op == "s_max_u32": r = max(a, b); nscc = None
        elif op == "s_mul_hi_u32": r = (a * b) >> 32
        elif op == "s_lshl1_add_u32": r = ((a << 1) + b) & M32; nscc = None
        elif op == "s_lshl2_add_u32": r = ((a << 2) + b) & M32; nscc = None
        elif op == "s_lshl3_add_u32": r = ((a << 3) + b) & M32; nscc = None
        elif op == "s_lshl4_add_u32": r = ((a << 4) + b) & M32; nscc = None
        elif op == "s_bfe_u32": r = (a >> (b & 31)) & ((1 << ((b >> 16) & 0x7f)) - 1); nscc = None
        else:
            r = None; nscc = None
        sg[d] = r
        if nscc != "keep": scc = nscc

def check_trace(tr, name=""):
    errs = []
    win = []
    for idx, c in enumerate(tr):
        dist = 0
        for p in reversed(win):
            g = required_gap(p, c)
            if g > dist:
                errs.append(f"[{name}] HAZARD need {g} have {dist}: {p.text().strip()}  ->  {c.text().strip()}")
            dist += p.states()
            if dist >= MAXGAP: break
        win.append(c)
        if len(win) > 16: win.pop(0)
    vm = []; lg = []
    pend = {}
    smem_out = False
    nbar = 0
    for c in tr:
        if c.op == "s_waitcnt":
            txt = " ".join(c.ops) + " " + c.mods
            m = re.search(r"vmcnt\((\d+)\)", txt)
            if m:
                n = int(m.group(1))
                while len(vm) > n:
                    p = vm.pop(0)
                    for r in p.w:
                        if pend.get(r) is p: del pend[r]
            m = re.search(r"lgkmcnt\((\d+)\)", txt)
            if m:
                n = int(m.group(1))
                if n > 0 and any(p.kind == "smem" for p in lg):
                    errs.append(f"[{name}] counted lgkmcnt with smem outstanding: {c.text()}")
                while len(lg) > n:
                    p = lg.pop(0)
                    for r in p.w:
                        if pend.get(r) is p: del pend[r]
            continue
        if c.op == "s_barrier": nbar += 1
        for r in list(c.r) + list(c.w):
            if r in pend:
                p = pend[r]
                if r in c.w and r not in c.r and c.kind == p.kind and c.kind in ("ds", "vmem"):
                    continue
                errs.append(f"[{name}] WAITCNT: {c.text().strip()} touches {r} pending from {p.text().strip()}")
                del pend[r]
        if c.kind == "vmem":
            vm.append(c)
            if len(vm) > 63: errs.append(f"[{name}] vmcnt overflow (>63 outstanding) at {c.text().strip()}")
            for r in c.w: pend[r] = c
        elif c.kind in ("ds", "smem"):
            lg.append(c)
            if len(lg) > 15 and c.kind == "ds":
                pass
            for r in c.w: pend[r] = c
    return nbar, errs
```

```python
import sys, importlib
from common import *
import k1, k2

def build(kernels, out):
    a = Asm()
    infos = []
    for g in kernels:
        infos.append(g(a))
    hdr = open("cdna_kernels/%s.s.ref" % NAME).read().split("\n")
    lines = [l for l in hdr if l.startswith(";") and "@launch" not in l and "Override launch" not in l and "grid=ceil" not in l]
    for k in infos:
        lines.append(f"; @launch kernel={k['name']} grid=({k['grid']},1,1) block=({k['block']},1,1) lds={k['lds']}")
    lines.append('.amdgcn_target "amdgcn-amd-amdhsa--gfx950"')
    lines.append(".text")
    txt = "\n".join(lines) + "\n" + a.text()
    txt += '.section .rodata,"a"\n'
    seen = set()
    for k in infos:
        if k["name"] in seen: continue
        seen.add(k["name"])
        txt += kd(k["name"], k["vgpr"])
    open(out, "w").write(txt)
    nerr = 0
    for k in infos:
        for wg in k.get("check_wgs", [0, 77, 255]):
            bars = []
            for w in range(k["waves"]):
                for pol in k.get("policies", [None]):
                    tr = trace(a.ins, k["name"], dict(wg=wg, wave=w), policy=pol or (lambda i, c: False))
                    nb, errs = check_trace(tr, f"{k['name']} wg{wg} w{w}")
                    bars.append(nb)
                    for e in errs[:10]:
                        print(e);
                    nerr += len(errs)
            if len(set(bars)) != 1:
                print("BARRIER MISMATCH", k["name"], wg, bars); nerr += 1
    print("built", out, "instructions:", sum(1 for i in a.ins if i.kind not in ("label", "raw")), "errors:", nerr)
    return nerr

if __name__ == "__main__":
    build([k1.gen_k1, k2.gen_k2], "cdna_kernels/%s.s" % NAME)
```

```python
from asmlib import *

NAME = "gated_mix__compressed_kv_cla__ssm_conv_h3__prompt"
KA = dict(x=0, ckv=8, wq=16, wuk=24, wuv=32, wo=40, bq=48, bk=56, bv=64, shk=72, ssmk=80, ssmd=88, gw=96, out=104, dbg=112, ws=120)
SZ = dict(x=2048*640*2, ckv=2048*512*2, wq=640*4096*2, wuk=512*4096*2, wuv=512*4096*2, wo=4096*640*2,
          bk=2048*640*2, bv=2048*640*2, shk=640*4*2, ssmk=640*2048*2, ssmd=640*2, gw=640*2, out=2048*640*2, ws=268435456, dbg=256)
MB = 1 << 20
WS_KV = 0
WS_CTX = 40 * MB
WS_WOF = 64 * MB
WS_UT = 72 * MB
WS_Y2T = 76 * MB
WS_G = 80 * MB

MF32 = "v_mfma_f32_32x32x16_bf16"
MF16 = "v_mfma_f32_16x16x32_bf16"

class LdsQ:
    def __init__(self, a, state=None):
        self.a = a
        self.q = list(state) if state else []
    def issue(self, op, *ops, mods=""):
        i = self.a(op, *ops, mods=mods)
        self.q.append(frozenset(i.w))
        return i
    def need(self, *operands):
        regs = set()
        for o in operands: regs |= set(regs_of(o))
        last = -1
        for n, w in enumerate(self.q):
            if w & regs: last = n
        if last >= 0:
            rem = min(len(self.q) - 1 - last, 15)
            self.a("s_waitcnt", f"lgkmcnt({rem})")
            self.q = self.q[len(self.q) - rem:] if rem else []
    def drain(self):
        if self.q:
            self.a("s_waitcnt", "lgkmcnt(0)")
        self.q = []

def srd(a, d, base_pair, nbytes, off=None):
    if off:
        a("s_add_u32", S(d), S(base_pair), hex(off))
        a("s_addc_u32", S(d + 1), S(base_pair + 1), 0)
    else:
        a("s_mov_b32", S(d), S(base_pair))
        a("s_mov_b32", S(d + 1), S(base_pair + 1))
    a("s_mov_b32", S(d + 2), hex(nbytes))
    a("s_mov_b32", S(d + 3), "0x20000")

def kernel_begin(a, name):
    a.raw(f".globl {name}")
    a.raw(".p2align 8")
    a.raw(f".type {name},@function")
    a.label(name)

def kd(name, vgpr, sgpr=102):
    acc = (vgpr + 3) // 4 * 4
    return f""".p2align 6
.amdhsa_kernel {name}
  .amdhsa_next_free_vgpr {vgpr}
  .amdhsa_next_free_sgpr {sgpr}
  .amdhsa_accum_offset {acc}
  .amdhsa_group_segment_fixed_size 0
  .amdhsa_kernarg_size 128
  .amdhsa_user_sgpr_count 2
  .amdhsa_user_sgpr_kernarg_segment_ptr 1
  .amdhsa_system_sgpr_workgroup_id_x 1
  .amdhsa_float_denorm_mode_32 3
.end_amdhsa_kernel
"""

class Stamps:
    def __init__(self, a, enable, base=60):
        self.a = a; self.en = enable; self.base = base; self.n = 0
    def stamp(self, real=False):
        if not self.en: return
        a = self.a
        a("s_memrealtime" if real else "s_memtime", S(self.base + 2 * self.n, 2))
        a("s_waitcnt", "lgkmcnt(0)")
        self.n += 1
    def flush(self, wave_sgpr, wg=0, vtmp=(0, 1)):
        if not self.en: return
        a = self.a
        skip = a.newlabel("stamp_skip")
        a("s_cmp_lg_u32", "s2", wg)
        a("s_cbranch_scc1", skip)
        a("s_load_dwordx2", S(96, 2), S(0, 2), KA["dbg"])
        a("s_waitcnt", "lgkmcnt(0)")
        a("s_mov_b32", "s98", 256)
        a("s_mov_b32", "s99", "0x20000")
        a("s_lshl_b32", "s100", wave_sgpr, 5)
        a("v_mov_b32", V(vtmp[0]), "s100")
        for i in range(self.n):
            a("v_mov_b32", V(vtmp[1]), S(self.base + 2 * i))
            a("buffer_store_dword", V(vtmp[1]), V(vtmp[0]), S(96, 4), 0, mods=f"offen offset:{4*i}")
            a("s_waitcnt", "vmcnt(0)")
        a.label(skip)
```

```python
from common import *

SLOT = 32768
def gen_k1(a, name="kv_kernel", abl=()):
    kernel_begin(a, name)
    done = a.newlabel("k1_done")
    a("s_cmp_ge_u32", "s2", 256)
    a("s_cbranch_scc1", done)
    st_ = Stamps(a, "stamp" in abl)
    st_.stamp(); st_.stamp(real=True)
    a("s_load_dwordx2", S(4, 2), S(0, 2), KA["ckv"])
    a("s_load_dwordx4", S(8, 4), S(0, 2), KA["wuk"])
    a("s_load_dwordx2", S(6, 2), S(0, 2), KA["ws"])
    a("v_lshrrev_b32", "v1", 6, "v0")
    a("v_and_b32", "v2", 63, "v0")
    a("v_readfirstlane_b32", "s3", "v1", ann={"val": lambda c: c["wave"]})
    a("s_and_b32", "s12", "s2", 7)
    a("s_lshr_b32", "s13", "s2", 3)
    a("s_lshr_b32", "s14", "s13", 3)
    a("s_lshl_b32", "s12", "s12", 2)
    a("s_add_u32", "s12", "s12", "s14")
    a("s_and_b32", "s13", "s13", 7)
    a("s_lshr_b32", "s14", "s3", 2)
    a("s_and_b32", "s15", "s3", 3)
    VA = [4, 5, 6, 7]; VB = [8, 9, 10, 11]
    a("s_lshl_b32", "s28", "s13", 8)
    a("s_lshl_b32", "s29", "s3", 5)
    a("s_add_u32", "s28", "s28", "s29")
    a("v_lshrrev_b32", "v3", 3, "v2")
    a("v_add_u32", "v3", "s28", "v3")
    a("v_lshlrev_b32", "v3", 10, "v3")
    a("v_lshrrev_b32", "v12", 4, "v2")
    a("v_and_b32", "v13", 7, "v2")
    a("v_xor_b32", "v12", "v12", "v13")
    a("v_xor_b32", "v13", 4, "v12")
    a("v_lshl_add_u32", "v12", "v12", 4, "v3")
    a("v_lshl_add_u32", "v13", "v13", 4, "v3")
    for i in range(4):
        a("v_add_u32", V(VA[i]), i * 8192 - i * 1024, "v12" if i % 2 == 0 else "v13")
    a("v_bfe_u32", "v3", "v2", 2, 2)
    a("s_lshl_b32", "s28", "s15", 4)
    a("v_add_u32", "v3", "s28", "v3")
    a("v_lshlrev_b32", "v3", 13, "v3")
    a("v_lshrrev_b32", "v12", 4, "v2")
    a("v_lshl_add_u32", "v3", "v12", 6, "v3")
    a("s_lshl_b32", "s28", "s12", 8)
    a("v_add_u32", "v3", "s28", "v3")
    a("v_and_b32", "v12", 3, "v2")
    a("v_xor_b32", "v13", 2, "v12")
    a("v_lshl_add_u32", "v12", "v12", 4, "v3")
    a("v_lshl_add_u32", "v13", "v13", 4, "v3")
    for i in range(4):
        a("v_add_u32", V(VB[i]), i * 32768 - i * 1024, "v12" if i < 2 else "v13")
    a("s_lshl_b32", "s30", "s3", 12)
    a("s_add_u32", "s31", "s30", 5 * SLOT)
    a("s_mov_b32", "s32", 0)
    a("s_mov_b32", "s33", 0)
    a("s_waitcnt", "lgkmcnt(0)")
    srd(a, 16, 4, SZ["ckv"])
    a("s_cmp_eq_u32", "s14", 0)
    a("s_cselect_b32", "s20", "s8", "s10")
    a("s_cselect_b32", "s21", "s9", "s11")
    a("s_mov_b32", "s22", hex(SZ["wuk"]))
    a("s_mov_b32", "s23", "0x20000")
    srd(a, 24, 6, 34 * MB)
    def dma_grp(which):
        vv, sr, so, inc = (VA, 16, "s32", 128) if which == "A" else (VB, 20, "s33", 64 * 8192)
        def mk(i):
            def f():
                if i == 0: a("s_mov_b32", "m0", "s30")
                a("buffer_load_dwordx4", V(vv[i]), S(sr, 4), so, mods=f"offen offset:{i*1024} lds")
                if i == 3:
                    a("s_add_u32", so, so, inc)
                    a("s_add_u32", "s30", "s30", SLOT)
                    a("s_cmp_lt_u32", "s30", "s31")
                    a("s_cselect_b32", "s35", 0, 5 * SLOT)
                    a("s_sub_u32", "s30", "s30", "s35")
            return f
        return [mk(i) for i in range(4)]
    for wch in "AB":
        for f in dma_grp(wch): f()
    TAl = [12, 13]; WAl = [14, 15]; TA = [16, 17]; WA = [18, 19]; VST = 20
    a("v_and_b32", "v3", 15, "v2")
    a("s_lshr_b32", "s28", "s15", 1)
    a("s_lshl_b32", "s28", "s28", 14)
    a("v_lshlrev_b32", "v21", 7, "v3")
    a("v_add_u32", "v21", "s28", "v21")
    a("v_bfe_u32", "v22", "v2", 1, 3)
    a("v_lshrrev_b32", "v23", 4, "v2")
    a("v_xor_b32", "v22", "v22", "v23")
    for ks in range(2):
        a("v_xor_b32", V(TAl[ks]), 4 * ks, "v22")
        a("v_lshl_add_u32", V(TAl[ks]), V(TAl[ks]), 4, "v21")
    a("s_lshl_b32", "s28", "s14", 14)
    a("s_and_b32", "s29", "s15", 1)
    a("s_lshl_b32", "s29", "s29", 9)
    a("s_add_u32", "s28", "s28", "s29")
    a("v_lshlrev_b32", "v21", 11, "v23")
    a("v_add_u32", "v21", "s28", "v21")
    a("v_bfe_u32", "v3", "v2", 2, 2)
    a("v_lshl_add_u32", "v21", "v3", 6, "v21")
    a("v_and_b32", "v3", 3, "v2")
    a("v_lshl_add_u32", "v21", "v3", 3, "v21")
    a("v_bfe_u32", "v3", "v2", 4, 1)
    a("v_lshl_add_u32", V(WAl[0]), "v3", 5, "v21")
    a("v_xor_b32", V(WAl[1]), 32, V(WAl[0]))
    for wch in "AB":
        for f in dma_grp(wch): f()
    a("s_lshl_b32", "s28", "s12", 6)
    a("s_lshl_b32", "s29", "s13", 3)
    a("s_add_u32", "s28", "s28", "s29")
    a("s_lshr_b32", "s29", "s15", 1)
    a("s_lshl_b32", "s29", "s29", 2)
    a("s_add_u32", "s28", "s28", "s29")
    a("s_lshl_b32", "s28", "s28", 14)
    a("s_lshl_b32", "s29", "s14", 13)
    a("s_add_u32", "s28", "s28", "s29")
    a("s_and_b32", "s29", "s15", 1)
    a("s_add_u32", "s34", "s14", 11)
    a("s_lshl_b32", "s29", "s29", "s34")
    a("s_add_u32", "s28", "s28", "s29")
    a("v_lshlrev_b32", V(VST), 4, "v2")
    a("v_add_u32", V(VST), "s28", V(VST))
    TOK = 24; WF = [56, 72]; ACC = 88
    for i in range(128):
        a("v_mov_b32", V(ACC + i), 0)
    tok = lambda kt: V(TOK + 4 * kt, 4)
    wf = lambda s, dt: V(WF[s] + 4 * dt, 4)
    accn = lambda kt, dt: ACC + 4 * (kt * 4 + dt)
    acc = lambda kt, dt: V(accn(kt, dt), 4)
    def rd_w(q, ks, dt, t):
        return lambda: q.issue("ds_read_b64_tr_b16", V(WF[ks] + 4 * dt + 2 * t, 2), V(WA[dt & 1]), mods=f"offset:{ks*8192 + t*1024 + (dt>>1)*256}")
    def rd_t(q, ks, kt):
        return lambda: q.issue("ds_read_b128", tok(kt), V(TA[ks]), mods=f"offset:{kt*2048}")
    a("s_mov_b32", "s36", 0)
    a("s_mov_b32", "s37", SLOT)
    def set_addr():
        for ks in range(2): a("v_add_u32", V(TA[ks]), "s36", V(TAl[ks]))
        for p in range(2): a("v_add_u32", V(WA[p]), "s37", V(WAl[p]))
    def adv_slots():
        for sreg in ("s36", "s37"):
            a("s_add_u32", sreg, sreg, 2 * SLOT)
            a("s_cmp_lt_u32", sreg, 5 * SLOT)
            a("s_cselect_b32", "s35", 0, 5 * SLOT)
            a("s_sub_u32", sreg, sreg, "s35")
    set_addr()
    st_.stamp()
    a("s_waitcnt", "vmcnt(8)")
    a("s_barrier")
    st_.stamp()
    BAR = 8
    q0 = LdsQ(a)
    def tail_reads(q):
        L = []
        L += [(BAR, rd_w(q, 0, 0, 0)), (BAR, rd_w(q, 0, 0, 1)), (BAR + 1, rd_t(q, 0, 0)), (BAR + 1, rd_w(q, 0, 1, 0)),
              (BAR + 2, rd_w(q, 0, 1, 1)), (BAR + 2, rd_t(q, 0, 1)), (BAR + 3, rd_t(q, 0, 2))]
        L += [(BAR + 4, rd_w(q, 0, 2, 0)), (BAR + 5, rd_w(q, 0, 2, 1)), (BAR + 6, rd_w(q, 0, 3, 0)), (BAR + 7, rd_t(q, 0, 3)), (BAR + 8, rd_w(q, 0, 3, 1))]
        L += [(4 * kt + 3, rd_t(q, 0, kt)) for kt in range(4, 8)]
        return L
    for _, f in tail_reads(q0): f()
    entry_state = list(q0.q)
    a("s_mov_b32", "s34", 0)
    lblV = a.newlabel("k1_v")
    a("s_cmp_eq_u32", "s14", 0)
    a("s_cbranch_scc0", lblV)
    for grp in range(2):
        if grp == 1: a.label(lblV)
        for last in (0, 1):
            loop = a.label(a.newlabel("k1_loop"))
            q = LdsQ(a, entry_state)
            for ks in range(2):
                fill = [[] for _ in range(32)]
                if ks == 0:
                    for kt in range(8): fill[4 * kt + 3].append(rd_t(q, 1, kt))
                    n = 0
                    for dt in range(4):
                        for t in range(2):
                            fill[4 * n + 1].append(rd_w(q, 1, dt, t)); n += 1
                    if not last:
                        for i, f in enumerate(dma_grp("A")): fill[8 * i + 2].append(f)
                else:
                    for n, f in tail_reads(q): fill[n].append(f)
                    if not last:
                        for i, f in enumerate(dma_grp("B")): fill[BAR + 2 + 6 * i].append(f)
                for n in range(32):
                    kt, dt = n // 4, n % 4
                    if ks == 1 and n == BAR:
                        q.drain()
                        a("s_waitcnt", "vmcnt(0)" if last else "vmcnt(4)")
                        a("s_barrier")
                        adv_slots(); set_addr()
                    q.need(tok(kt), wf(ks, dt))
                    if "nomfma" in abl: pass
                    elif grp == 0: a(MF16, acc(kt, dt), wf(ks, dt), tok(kt), acc(kt, dt))
                    else: a(MF16, acc(kt, dt), tok(kt), wf(ks, dt), acc(kt, dt))
                    for f in fill[n]: f()
            assert q.q == entry_state, (q.q, entry_state)
            a("s_add_u32", "s34", "s34", 1)
            a("s_cmp_lt_u32", "s34", 8 if last else 6)
            a("s_cbranch_scc1", loop)
        a("s_waitcnt", "lgkmcnt(0)")
        if grp == 0: st_n = st_.n
        else: st_.n = st_n
        st_.stamp()
        n = 0
        sfx = "" if "plain" in abl else " sc1"
        for ksub in range(4):
            a("s_mov_b32", "s28", ksub * 16384)
            for u in range(4):
                P = TOK + 4 * (n % 8); n += 1
                if grp == 0:
                    kt2, Tp = u // 2, u % 2
                    b0 = accn(2 * ksub + kt2, 2 * Tp); b1 = accn(2 * ksub + kt2, 2 * Tp + 1)
                    off = None
                    so_extra = kt2 * 4096 + Tp * 1024
                else:
                    b0 = accn(2 * ksub, u); b1 = accn(2 * ksub + 1, u)
                    so_extra = u * 1024
                a("v_cvt_pk_bf16_f32", V(P), V(b0), V(b0 + 1))
                a("v_cvt_pk_bf16_f32", V(P + 1), V(b0 + 2), V(b0 + 3))
                a("v_cvt_pk_bf16_f32", V(P + 2), V(b1), V(b1 + 1))
                a("v_cvt_pk_bf16_f32", V(P + 3), V(b1 + 2), V(b1 + 3))
                if so_extra >= 4096:
                    if so_extra == 4096: a("s_add_u32", "s28", "s28", 4096)
                    so_extra -= 4096
                if "nostore" not in abl or n == 1:
                    a("buffer_store_dwordx4", V(P, 4), V(VST), S(24, 4), "s28", mods=f"offen offset:{so_extra}" + sfx)
        if grp == 0:
            lblE = a.newlabel("k1_end"); a("s_branch", lblE)
    a.label(lblE)
    st_.stamp()
    if st_.en: a("s_waitcnt", "vmcnt(0)")
    st_.stamp(); st_.stamp(real=True)
    st_.flush("s3", wg=100)
    a.label(done)
    a("s_endpgm")
    return dict(name=name, vgpr=ACC + 128, grid=256, block=512, lds=5 * SLOT, waves=8)
```

```python
from common import *
import math, struct

def f32bits(x): return struct.unpack("<I", struct.pack("<f", x))[0]
QSCALE = math.log2(math.e) / math.sqrt(128.0)
NEG = 0xff7fffff & 0xffff0000 | 0
NEG = 0xff000000
QSLOT = 49152
K0OFF = 147456

R_O = 16; R_Q = 80; R_S = [112, 128]; R_C = 144; R_P = [160, 168]; R_F = 176; R_T = 208; R_L = 216; R_TS = 218; R_X = 220
NV = 228
vKV = 3; vDMA = 4; vST = 5; vLANE = 2; vQI = 6

def gen_k2(a, name="attn_kernel", abl=()):
    kernel_begin(a, name)
    done = a.newlabel("k2_done")
    a("s_cmp_ge_u32", "s2", 256)
    a("s_cbranch_scc1", done)
    st_ = Stamps(a, "stamp" in abl)
    st_.stamp(); st_.stamp(real=True)
    a("s_load_dwordx2", S(4, 2), S(0, 2), KA["x"])
    a("s_load_dwordx2", S(8, 2), S(0, 2), KA["wq"])
    a("s_load_dwordx2", S(6, 2), S(0, 2), KA["ws"])
    a("v_lshrrev_b32", "v1", 6, "v0")
    a("v_and_b32", "v2", 63, "v0")
    a("v_readfirstlane_b32", "s3", "v1", ann={"val": lambda c: c["wave"]})
    a("s_and_b32", "s12", "s2", 7)
    a("s_lshr_b32", "s13", "s2", 3)
    a("s_lshr_b32", "s14", "s13", 3)
    a("s_lshl_b32", "s12", "s12", 2)
    a("s_add_u32", "s12", "s12", "s14")
    a("s_and_b32", "s13", "s13", 7)
    a("s_lshr_b32", "s14", "s3", 2)
    a("s_and_b32", "s15", "s3", 3)
    a("s_sub_u32", "s38", 15, "s13")
    a("s_cmp_eq_u32", "s14", 0)
    a("s_cselect_b32", "s39", "s38", "s13")
    a("s_lshl_b32", "s40", "s39", 2)
    a("s_add_u32", "s40", "s40", "s15")
    VA = [8, 9, 10, 11]; VB = [12, 13]
    XAl = [R_S[0], R_S[0] + 1]; WAl = [R_S[0] + 2, R_S[0] + 3]; XA = [R_S[0] + 4, R_S[0] + 5]; WA = [R_S[0] + 6, R_S[0] + 7]
    t0, t1, t2 = R_S[1], R_S[1] + 1, R_S[1] + 2
    a("s_lshl_b32", "s28", "s40", 5)
    a("v_lshrrev_b32", V(t0), 3, "v2")
    a("v_add_u32", V(t0), "s28", V(t0))
    a("v_mul_u32_u24", V(t0), 1280, V(t0))
    a("v_lshrrev_b32", V(t1), 4, "v2")
    a("v_and_b32", V(t2), 7, "v2")
    a("v_xor_b32", V(t1), V(t1), V(t2))
    a("v_xor_b32", V(t2), 4, V(t1))
    a("v_lshl_add_u32", V(t1), V(t1), 4, V(t0))
    a("v_lshl_add_u32", V(t2), V(t2), 4, V(t0))
    for i in range(4):
        a("v_add_u32", V(VA[i]), i * 8 * 1280 - i * 1024, V(t1) if i % 2 == 0 else V(t2))
    a("v_bfe_u32", V(t0), "v2", 2, 2)
    a("s_lshl_b32", "s28", "s3", 3)
    a("v_add_u32", V(t0), "s28", V(t0))
    a("v_lshlrev_b32", V(t0), 13, V(t0))
    a("v_lshrrev_b32", V(t1), 4, "v2")
    a("v_lshl_add_u32", V(t0), V(t1), 6, V(t0))
    a("s_lshl_b32", "s28", "s12", 8)
    a("v_add_u32", V(t0), "s28", V(t0))
    a("s_and_b32", "s28", "s3", 1)
    a("s_lshl_b32", "s28", "s28", 1)
    a("v_and_b32", V(t1), 3, "v2")
    a("v_xor_b32", V(t1), "s28", V(t1))
    a("v_lshl_add_u32", V(VB[0]), V(t1), 4, V(t0))
    a("v_add_u32", V(VB[1]), 32768 - 1024, V(VB[0]))
    a("s_mov_b32", "s30", 2 * QSLOT)
    a("s_lshl_b32", "s31", "s3", 12)
    a("s_lshl_b32", "s41", "s3", 11)
    a("s_add_u32", "s41", "s41", 32768)
    a("s_mov_b32", "s32", 0)
    a("s_mov_b32", "s33", 0)
    a("s_waitcnt", "lgkmcnt(0)")
    srd(a, 16, 4, SZ["x"])
    srd(a, 20, 8, SZ["wq"])
    srd(a, 24, 6, 32 * MB)
    srd(a, 44, 6, 2048 * 4096 * 2, off=WS_CTX)
    def qdma():
        L = []
        def mk(i):
            def f():
                if i == 0: a("s_add_u32", "m0", "s30", "s31")
                if i == 4: a("s_add_u32", "m0", "s30", "s41")
                if i < 4: a("buffer_load_dwordx4", V(VA[i]), S(16, 4), "s32", mods=f"offen offset:{i*1024} lds")
                else: a("buffer_load_dwordx4", V(VB[i - 4]), S(20, 4), "s33", mods=f"offen offset:{(i-4)*1024} lds")
                if i == 5:
                    a("s_add_u32", "s32", "s32", 128)
                    a("s_add_u32", "s33", "s33", 64 * 8192)
                    a("s_add_u32", "s30", "s30", QSLOT)
                    a("s_cmp_lt_u32", "s30", 3 * QSLOT)
                    a("s_cselect_b32", "s30", "s30", 0)
            return f
        return [mk(i) for i in range(6)]
    for f in qdma(): f()
    a("v_and_b32", V(t0), 15, "v2")
    a("v_lshlrev_b32", V(t1), 7, V(t0))
    a("v_add_u32", V(t1), "s31", V(t1))
    a("v_bfe_u32", V(t2), "v2", 1, 3)
    a("v_lshrrev_b32", "v1", 4, "v2")
    a("v_xor_b32", V(t2), V(t2), "v1")
    for ks in range(2):
        a("v_xor_b32", V(XAl[ks]), 4 * ks, V(t2))
        a("v_lshl_add_u32", V(XAl[ks]), V(XAl[ks]), 4, V(t1))
    a("v_lshlrev_b32", V(t1), 2, "v1")
    a("v_sub_u32", V(vQI), V(t0), V(t1))
    a("v_lshlrev_b32", V(t1), 11, "v1")
    a("v_add_u32", V(t1), 32768, V(t1))
    a("v_bfe_u32", V(t0), "v2", 2, 2)
    a("v_lshl_add_u32", V(t1), V(t0), 6, V(t1))
    a("v_and_b32", V(t0), 3, "v2")
    a("v_lshl_add_u32", V(t1), V(t0), 3, V(t1))
    a("v_bfe_u32", V(t0), "v2", 4, 1)
    a("v_lshl_add_u32", V(WAl[0]), V(t0), 5, V(t1))
    a("v_xor_b32", V(WAl[1]), 32, V(WAl[0]))
    for _ in range(2):
        for f in qdma(): f()
    for i in range(64): a("v_mov_b32", V(R_O + i), 0)
    a("s_mov_b32", "s36", 2 * QSLOT)
    def set_addr():
        for ks in range(2): a("v_add_u32", V(XA[ks]), "s36", V(XAl[ks]))
        for p in range(2): a("v_add_u32", V(WA[p]), "s36", V(WAl[p]))
    set_addr()
    wf = lambda dt: V(R_F + 4 * dt, 4)
    xf = lambda ks, qt: V(R_P[ks] + 4 * qt, 4)
    On = lambda dt, qt: R_O + 4 * (dt * 2 + qt)
    O = lambda dt, qt: V(On(dt, qt), 4)
    def rd_w(q, ks, dt):
        def f():
            for t in range(2):
                q.issue("ds_read_b64_tr_b16", V(R_F + 4 * dt + 2 * t, 2), V(WA[dt & 1]), mods=f"offset:{ks*8192 + t*1024 + (dt>>1)*256}")
        return f
    def rd_x(q, ks, qt):
        return lambda: q.issue("ds_read_b128", xf(ks, qt), V(XA[ks]), mods=f"offset:{qt*2048}")
    QBAR = 6
    def q_tail(q):
        L = [(QBAR, rd_x(q, 0, 0)), (QBAR, rd_w(q, 0, 0)), (QBAR + 1, rd_x(q, 0, 1)), (QBAR + 1, rd_w(q, 0, 1)), (QBAR + 2, rd_w(q, 0, 2)), (QBAR + 3, rd_w(q, 0, 3))]
        L += [(max(2 * dt + 1, QBAR + dt), rd_w(q, 0, dt)) for dt in range(4, 8)]
        return L
    st_.stamp()
    a("s_waitcnt", "vmcnt(12)")
    a("s_barrier")
    q0 = LdsQ(a)
    for _, f in q_tail(q0): f()
    qentry = list(q0.q)
    a("s_mov_b32", "s34", 0)
    for last in (0, 1):
        loop = a.label(a.newlabel("q_loop"))
        q = LdsQ(a, qentry)
        for ks in range(2):
            fill = [[] for _ in range(16)]
            if ks == 0:
                fill[0].append(rd_x(q, 1, 0)); fill[2].append(rd_x(q, 1, 1))
                for dt in range(8): fill[2 * dt + 1].append(rd_w(q, 1, dt))
            else:
                for n, f in q_tail(q): fill[n].append(f)
                if not last:
                    for i, f in enumerate(qdma()): fill[QBAR + 1 + (i * 3) // 2].append(f)
            for n in range(16):
                dt, qt = n // 2, n % 2
                if ks == 1 and n == QBAR:
                    q.drain()
                    a("s_waitcnt", "vmcnt(0)" if last else "vmcnt(6)")
                    a("s_barrier")
                    a("s_add_u32", "s36", "s36", QSLOT)
                    a("s_cmp_lt_u32", "s36", 3 * QSLOT)
                    a("s_cselect_b32", "s36", "s36", 0)
                    set_addr()
                q.need(wf(dt), xf(ks, qt))
                a(MF16, O(dt, qt), wf(dt), xf(ks, qt), O(dt, qt))
                for f in fill[n]: f()
        assert q.q == qentry
        a("s_add_u32", "s34", "s34", 1)
        a("s_cmp_lt_u32", "s34", 10 if last else 7)
        a("s_cbranch_scc1", loop)
    a("s_waitcnt", "lgkmcnt(0)")
    a("s_barrier")
    st_.stamp()
    a("v_lshlrev_b32", V(vKV), 4, "v2")
    a("s_lshl_b32", "s28", "s12", 20)
    a("s_lshl_b32", "s29", "s15", 14)
    a("s_add_u32", "s28", "s28", "s29")
    a("s_add_u32", "s28", "s28", 8192)
    a("v_add_u32", V(vDMA), "s28", V(vKV))
    a("s_lshl_b32", "s30", "s15", 14)
    a("s_mov_b32", "s32", 0)
    a("s_mov_b32", "s33", 0)
    def adma():
        def mk(i):
            def f():
                if i % 4 == 0:
                    a("s_add_u32", "m0", "s30", (i // 4) * 4096)
                    a("s_add_u32", "s35", "s32", (i // 4) * 4096)
                a("buffer_load_dwordx4", V(vDMA), S(24, 4), "s35", mods=f"offen offset:{(i%4)*1024} lds")
                if i == 15:
                    a("s_xor_b32", "s30", "s30", 65536)
                    a("s_add_u32", "s32", "s32", 65536)
                    a("s_add_u32", "s33", "s33", 1)
            return f
        return [mk(i) for i in range(16)]
    skipd = a.newlabel("skip_dma0")
    a("s_cmp_eq_u32", "s14", 0)
    a("s_cbranch_scc1", skipd)
    a("s_lshl_b32", "s28", "s12", 20)
    a("s_lshl_b32", "s29", "s15", 11)
    a("s_add_u32", "s28", "s28", "s29")
    a("s_add_u32", "m0", "s29", K0OFF)
    for i in range(2):
        a("buffer_load_dwordx4", V(vKV), S(24, 4), "s28", mods=f"offen offset:{i*1024} lds")
    for _ in range(2):
        for f in adma(): f()
    a.label(skipd)
    a("s_mov_b32", "s28", hex(f32bits(QSCALE)))
    Qn = lambda qt, T: R_Q + 4 * (qt * 4 + T)
    Q = lambda qt, T: V(Qn(qt, T), 4)
    for qt in range(2):
        for T in range(4):
            for hf in range(2):
                b = On(2 * T + hf, qt)
                for r_ in range(4): a("v_mul_f32", V(b + r_), "s28", V(b + r_))
                a("v_cvt_pk_bf16_f32", V(Qn(qt, T) + 2 * hf), V(b), V(b + 1))
                a("v_cvt_pk_bf16_f32", V(Qn(qt, T) + 2 * hf + 1), V(b + 2), V(b + 3))
    for i in range(64): a("v_mov_b32", V(R_O + i), 0)
    for i in range(16): a("v_mov_b32", V(R_C + i), 0)
    a("v_mov_b32", V(R_L), 0); a("v_mov_b32", V(R_L + 1), 0)
    a("s_lshl_b32", "s28", "s40", 6)
    a("s_add_u32", "s28", "s28", "s12")
    a("s_lshl_b32", "s28", "s28", 12)
    a("v_add_u32", V(vST), "s28", V(vKV))
    a("s_mov_b32", "s42", hex(f32bits(2.0 ** 30)))
    a("s_mov_b32", "s43", hex(NEG))
    a("v_add_u32", V(R_X), K0OFF, V(vKV))
    Sn = lambda sb, kt2, qt: R_S[sb] + 4 * (kt2 * 2 + qt)
    Cn = lambda kt2, qt: R_C + 4 * (kt2 * 2 + qt)
    F = lambda i: V(R_F + 4 * i, 4)
    def apply_mask():
        a("v_mov_b32", V(R_X + 1), "s43")
        for r_ in range(4):
            a("v_cmp_le_i32", "vcc", r_, V(vQI))
            a("v_cndmask_b32", V(Cn(0, 0) + r_), V(R_X + 1), V(Cn(0, 0) + r_), "vcc")
            a("v_cndmask_b32", V(Cn(1, 1) + r_), V(R_X + 1), V(Cn(1, 1) + r_), "vcc")
            a("v_mov_b32", V(Cn(1, 0) + r_), V(R_X + 1))
    def rdK(q, i, p, base=vKV): return (lambda: None) if "nolds" in abl else lambda: q.issue("ds_read_b128", F(i), V(base), mods=f"offset:{p*16384 + 8192 + i*1024}")
    def rdV(q, i, p): return (lambda: None) if "nolds" in abl else lambda: q.issue("ds_read_b128", F(i), V(vKV), mods=f"offset:{p*16384 + i*1024}")
    def sm_ops(sb):
        ops = []
        order = [(0, 0, 0), (0, 1, 0), (0, 0, 1), (0, 1, 1), (1, 0, 0), (1, 1, 0), (1, 0, 1), (1, 1, 1)]
        seen = {0: 0, 1: 0}
        for k, (kt2, qt, pi) in enumerate(order):
            s0 = Sn(sb, kt2, qt) + 2 * pi
            ta = R_T + 2 * (k % 4); tb = ta + 1
            EX = "v_mov_b32" if "noexp" in abl else "v_exp_f32"
            e0 = lambda s0=s0, ta=ta: a(EX, V(ta), V(s0))
            e1 = lambda s0=s0, tb=tb: a(EX, V(tb), V(s0 + 1))
            if seen[qt] == 0:
                ad = [lambda ta=ta, tb=tb, qt=qt: a("v_add_f32", V(R_TS + qt), V(ta), V(tb))]
            else:
                ad = [lambda ta=ta, qt=qt: a("v_add_f32", V(R_TS + qt), V(R_TS + qt), V(ta)),
                      lambda tb=tb, qt=qt: a("v_add_f32", V(R_TS + qt), V(R_TS + qt), V(tb))]
            seen[qt] += 1
            cv = lambda ta=ta, tb=tb, kt2=kt2, qt=qt, pi=pi: a("v_cvt_pk_bf16_f32", V(R_P[sb] + 4 * qt + 2 * kt2 + pi), V(ta), V(tb))
            ops.append((e0, e1, ad, cv))
        return ops
    def sm_sched(sb):
        sl = [[] for _ in range(32)]
        for k, (e0, e1, ad, cv) in enumerate(sm_ops(sb)):
            b = 1 + (k * 7) // 2
            sl[b].append(e0); sl[b + 1].append(e1)
            sl[b + 2] += ad[:1]; sl[b + 3] += ad[1:]; sl[b + 3].append(cv)
        sl[30].append(lambda: a("v_add_f32", V(R_X + 1), V(R_TS), V(R_TS + 1)))
        sl[31].append(lambda: a("v_cmp_nge_f32", "vcc", "s42", V(R_X + 1)))
        if "novalu" in abl: sl = [[] for _ in range(32)]
        return sl
    rare_lbl = [a.newlabel("rare0"), a.newlabel("rare1")]
    ret_sites = [[], []]
    def check(sb):
        ret = a.newlabel("ret")
        k = len(ret_sites[sb]); ret_sites[sb].append(ret)
        a("s_mov_b32", "s48", k)
        if not ("novalu" in abl or "noexp" in abl or "nolds" in abl): a("s_cbranch_vccnz", rare_lbl[sb])
        a.label(ret)
        a("v_add_f32", V(R_L), V(R_L), V(R_TS))
        a("v_add_f32", V(R_L + 1), V(R_L + 1), V(R_TS + 1))
    def rowmax(sb):
        for qt in range(2):
            m = R_X + 2 + qt; s0 = Sn(sb, 0, qt); s1 = Sn(sb, 1, qt)
            a("v_max3_f32", V(m), V(s0), V(s0 + 1), V(s0 + 2))
            a("v_max3_f32", V(m), V(m), V(s0 + 3), V(s1))
            a("v_max3_f32", V(m), V(m), V(s1 + 1), V(s1 + 2))
            a("v_max_f32", V(m), V(m), V(s1 + 3))
        for op in ("v_permlane32_swap_b32", "v_permlane16_swap_b32"):
            for qt in range(2):
                m = R_X + 2 + qt; c = R_X + 4 + qt
                a("v_mov_b32", V(c), V(m))
            for qt in range(2):
                m = R_X + 2 + qt; c = R_X + 4 + qt
                a(op, V(m), V(c))
                a("v_max_f32", V(m), V(m), V(c))
    def X(q, sb, fill, p=None):
        for n in range(16):
            i, qt = n // 2, n % 2
            kt2, T = i // 4, i % 4
            if qt == 0 and i % 2 == 0: q.need(F(i), F(i + 1))
            d = V(Sn(sb, kt2, qt), 4)
            a(MF16, d, F(i), Q(qt, T), V(Cn(kt2, qt), 4) if T == 0 else d)
            for f in fill[n]: f()
    def Y(q, sb, fill, hook=None):
        for n in range(16):
            dt, qt = n // 2, n % 2
            if hook and n == hook[0]: hook[1]()
            if qt == 0 and dt % 2 == 0: q.need(F(dt), F(dt + 1))
            a(MF16, O(dt, qt), F(dt), V(R_P[sb] + 4 * qt, 4), O(dt, qt))
            for f in fill[n]: f()
    nomask = a.newlabel("nomask0")
    a("s_cmp_lg_u32", "s40", 0)
    a("s_cbranch_scc1", nomask)
    apply_mask()
    a.label(nomask)
    a("s_waitcnt", "vmcnt(16)")
    a("s_barrier")
    st_.stamp()
    q = LdsQ(a)
    for i in range(8): q.issue("ds_read_b128", F(i), V(R_X), mods=f"offset:{i*1024}")
    fill = [[] for _ in range(16)]
    for i in range(8): fill[2 * i + 1].append(rdK(q, i, 0))
    X(q, 0, fill)
    rowmax(0)
    for qt in range(2):
        for kt2 in range(2):
            for r_ in range(4):
                a("v_sub_f32", V(Sn(0, kt2, qt) + r_), V(Sn(0, kt2, qt) + r_), V(R_X + 2 + qt))
                a("v_sub_f32", V(Cn(kt2, qt) + r_), 0, V(R_X + 2 + qt))
    for sl in sm_sched(0)[:16]:
        for f in sl: f()
    a("s_mov_b32", "s34", 0)
    entry = list(q.q)
    tails = [a.newlabel(f"tail{p}") for p in range(4)]
    lblB = a.newlabel("loopB")
    a("s_cmp_eq_u32", "s14", 0)
    a("s_cbranch_scc0", lblB)
    for grp in range(2):
        if grp == 1: a.label(lblB)
        loop = a.label(a.newlabel("attn_loop"))
        q = LdsQ(a, entry)
        for p in range(4):
            sb = p & 1
            a("s_cmp_eq_u32", "s34", "s40")
            a("s_cbranch_scc1", tails[p])
            a("s_add_u32", "s34", "s34", 1)
            nm = a.newlabel("nm")
            a("s_cmp_lg_u32", "s34", "s40")
            a("s_cbranch_scc1", nm)
            apply_mask()
            a.label(nm)
            assert q.q == entry
            fill = [list(x) for x in sm_sched(sb)[16:]]
            for i in range(8): fill[2 * i + 1].insert(0, rdV(q, i, p))
            X(q, sb ^ 1, fill)
            check(sb)
            fill = [list(x) for x in sm_sched(sb ^ 1)[:16]]
            if p < 3:
                for i in range(8): fill[2 * i + 1].insert(0, rdK(q, i, p + 1))
                Y(q, sb, fill)
            else:
                HB = 8
                def hook():
                    q.drain()
                    if grp == 1: a("s_waitcnt", "vmcnt(0)")
                    a("s_barrier")
                    a("v_xor_b32", V(vKV), 65536, V(vKV))
                for i in reversed(range(8)): fill[[8, 8, 9, 9, 10, 11, 13, 15][i]].insert(0, rdK(q, i, 0))
                if grp == 1:
                    def gate():
                        a("s_cmp_le_u32", "s33", "s38")
                        a("s_cselect_b32", "s26", hex(32 * MB), 0)
                    fill[HB].append(gate)
                    for i, f in enumerate(adma()): fill[HB + i // 2].append(f)
                Y(q, sb, fill, hook=(HB, hook))
        assert q.q == entry, (q.q, entry)
        a("s_branch", loop)
    epi = a.newlabel("epi")
    for p in range(4):
        a.label(tails[p])
        sb = p & 1
        q = LdsQ(a, entry)
        for i in range(8): rdV(q, i, p)()
        for sl in sm_sched(sb)[16:]:
            for f in sl: f()
        check(sb)
        Y(q, sb, [[] for _ in range(16)])
        a("s_branch", epi)
    for sb in range(2):
        a.label(rare_lbl[sb])
        a("s_nop", 7)
        rowmax(sb)
        for qt in range(2):
            m = R_X + 2 + qt; f_ = R_X + 4 + qt
            a("v_max_f32", V(m), 0, V(m))
            a("v_sub_f32", V(f_), 0, V(m))
            a("v_exp_f32", V(f_), V(f_))
        for qt in range(2):
            m = R_X + 2 + qt; f_ = R_X + 4 + qt
            for dt in range(8):
                for r_ in range(4): a("v_mul_f32", V(On(dt, qt) + r_), V(f_), V(On(dt, qt) + r_))
            a("v_mul_f32", V(R_L + qt), V(f_), V(R_L + qt))
            for kt2 in range(2):
                for r_ in range(4):
                    for reg in (Sn(sb, kt2, qt), Sn(sb ^ 1, kt2, qt), Cn(kt2, qt)):
                        a("v_sub_f32", V(reg + r_), V(reg + r_), V(m))
        for sl in sm_sched(sb)[:30]:
            for f in sl: f()
        a("s_nop", 1)
        for k, ret in enumerate(ret_sites[sb][:-1]):
            a("s_cmp_eq_u32", "s48", k)
            a("s_cbranch_scc1", ret)
        a("s_branch", ret_sites[sb][-1])
    a.label(epi)
    for op in ("v_permlane32_swap_b32", "v_permlane16_swap_b32"):
        for qt in range(2): a("v_mov_b32", V(R_X + 4 + qt), V(R_L + qt))
        for qt in range(2):
            a(op, V(R_L + qt), V(R_X + 4 + qt))
            a("v_add_f32", V(R_L + qt), V(R_L + qt), V(R_X + 4 + qt))
    for qt in range(2): a("v_rcp_f32", V(R_L + qt), V(R_L + qt))
    a("s_mov_b32", "s28", 0)
    a("s_mov_b32", "s29", 32 * 4096)
    n = 0
    for qt in range(2):
        for T in range(4):
            P = R_F + 4 * (n % 8); n += 1
            for hf in range(2):
                b = On(2 * T + hf, qt)
                for r_ in range(4): a("v_mul_f32", V(b + r_), V(R_L + qt), V(b + r_))
                a("v_cvt_pk_bf16_f32", V(P + 2 * hf), V(b), V(b + 1))
                a("v_cvt_pk_bf16_f32", V(P + 2 * hf + 1), V(b + 2), V(b + 3))
            a("buffer_store_dwordx4", V(P, 4), V(vST), S(44, 4), "s28" if qt == 0 else "s29", mods=f"offen offset:{T*1024}")
    fin = a.newlabel("fin")
    a("s_cmp_eq_u32", "s14", 0)
    a("s_cbranch_scc1", fin)
    ld = a.label(a.newlabel("loader"))
    a("s_cmp_ge_u32", "s39", "s38")
    a("s_cbranch_scc1", fin)
    a("s_waitcnt", "vmcnt(0)")
    a("s_barrier")
    a("s_add_u32", "s39", "s39", 1)
    a("s_cmp_gt_u32", "s33", "s38")
    a("s_cbranch_scc1", ld)
    for f in adma(): f()
    a("s_branch", ld)
    a.label(fin)
    st_.stamp()
    if st_.en: a("s_waitcnt", "vmcnt(0)")
    st_.stamp(); st_.stamp(real=True)
    st_.flush("s3", wg=int([x for x in abl if x.startswith("wg")][0][2:]) if any(x.startswith("wg") for x in abl) else 0)
    a.label(done)
    a("s_endpgm")
    pol_rare = lambda i, c: (i.op == "s_cbranch_vccnz" and c % 3 == 1)
    return dict(name=name, vgpr=NV, grid=256, block=512, lds=160 * 1024, waves=8, check_wgs=[0, 8, 24, 56, 255], policies=[None, pol_rare])
```

```python
import sys, functools
from build import *
def gen(a, name="un_kernel"):
    kernel_begin(a, name)
    done = a.newlabel("done")
    a("s_cmp_ge_u32", "s2", 1); a("s_cbranch_scc1", done)
    a("s_load_dwordx2", S(4, 2), S(0, 2), KA["ssmk"])
    a("s_load_dwordx2", S(6, 2), S(0, 2), KA["ws"])
    a("s_waitcnt", "lgkmcnt(0)")
    srd(a, 16, 4, SZ["ssmk"])
    srd(a, 20, 6, 1 << 20)
    a("v_lshlrev_b32", "v2", 4, "v0")
    a("buffer_load_dwordx4", V(8, 4), "v2", S(16, 4), 0, mods="offen")
    a("s_waitcnt", "vmcnt(0)")
    a("ds_write_b128", "v2", V(8, 4))
    a("s_waitcnt", "lgkmcnt(0)")
    a("v_lshlrev_b32", "v3", 1, "v0")
    a("s_memtime", S(30, 2)); a("s_waitcnt", "lgkmcnt(0)")
    for i in range(16): a("ds_read_b128", V(12, 4), "v3", mods=f"offset:{i*64}")
    a("s_waitcnt", "lgkmcnt(0)")
    a("s_memtime", S(32, 2)); a("s_waitcnt", "lgkmcnt(0)")
    for i in range(16): a("ds_read_b128", V(12, 4), "v2", mods=f"offset:0")
    a("s_waitcnt", "lgkmcnt(0)")
    a("s_memtime", S(34, 2)); a("s_waitcnt", "lgkmcnt(0)")
    a("ds_read_b128", V(12, 4), "v3")
    a("ds_read_b64", V(16, 2), "v3")
    a("ds_read_b64", V(18, 2), "v3", mods="offset:8")
    a("buffer_load_dwordx4", V(20, 4), "v3", S(16, 4), 0, mods="offen")
    a("s_waitcnt", "vmcnt(0) lgkmcnt(0)")
    a("buffer_store_dwordx4", V(12, 4), "v2", S(20, 4), 0, mods="offen")
    a("buffer_store_dwordx4", V(16, 4), "v2", S(20, 4), 0, mods="offen offset:1024")
    a("buffer_store_dwordx4", V(20, 4), "v2", S(20, 4), 0, mods="offen offset:2048")
    a("s_sub_u32", "s36", "s32", "s30"); a("s_sub_u32", "s37", "s34", "s32")
    a("v_mov_b32", "v24", "s36"); a("v_mov_b32", "v25", "s37")
    a("buffer_store_dwordx2", V(24, 2), "v2", S(20, 4), 0, mods="offen offset:3072")
    a.label(done)
    a("s_endpgm")
    return dict(name=name, vgpr=32, grid=1, block=64, lds=4096, waves=1, check_wgs=[0])
build([gen], "mb_unal.s")
```

```python
import re

def V(i, n=1):
    return f"v{i}" if n == 1 else f"v[{i}:{i+n-1}]"
def S(i, n=1):
    return f"s{i}" if n == 1 else f"s[{i}:{i+n-1}]"

_reg_re = re.compile(r"^(-|abs\()?([vsa])(\d+)\)?$")
_rng_re = re.compile(r"^([vsa])\[(\d+):(\d+)\]$")

def regs_of(op):
    op = op.strip()
    m = _reg_re.match(op)
    if m:
        return [(m.group(2), int(m.group(3)))]
    m = _rng_re.match(op)
    if m:
        return [(m.group(1), i) for i in range(int(m.group(2)), int(m.group(3)) + 1)]
    if op in ("vcc", "vcc_lo", "vcc_hi"):
        return [("s", "vcc")]
    if op in ("exec", "exec_lo", "exec_hi"):
        return [("s", "exec")]
    if op == "m0":
        return [("s", "m0")]
    return []

TRANS = ("v_exp_f32", "v_log_f32", "v_rcp_f32", "v_rsq_f32", "v_sqrt_f32", "v_sin_f32", "v_cos_f32", "v_rcp_iflag_f32")

class Ins:
    def __init__(self, op, ops, mods="", ann=None, comment=""):
        self.op = op; self.ops = list(ops); self.mods = mods; self.ann = ann or {}; self.comment = comment
        self.label = None
        self.classify()
    def text(self):
        if self.op == "label":
            return f"{self.ops[0]}:"
        if self.op == "raw":
            return self.ops[0]
        t = "    " + self.op
        if self.ops:
            t += " " + ", ".join(self.ops)
        if self.mods:
            t += " " + self.mods
        if self.comment:
            t += "    ; " + self.comment
        return t
    def classify(self):
        op = self.op; o = self.ops
        self.w = []; self.r = []
        self.kind = "other"
        R = lambda idxs: [x for i in idxs for x in regs_of(o[i])]
        if op in ("label", "raw"):
            self.kind = op; return
        if op.startswith("v_mfma"):
            self.kind = "mfma"
            self.w = R([0]); self.ra = R([1]); self.rb = R([2]); self.rc = R([3])
            self.r = self.ra + self.rb + self.rc
            self.passes = 8 if "32x32" in op else 4
        elif op.startswith("v_cmp"):
            self.kind = "valu"; self.w = R([0]); self.r = R(range(1, len(o)))
            if op.startswith("v_cmpx"): self.w += [("s", "exec")]
        elif op in ("v_readfirstlane_b32", "v_readlane_b32"):
            self.kind = "valu"; self.w = R([0]); self.r = R(range(1, len(o)))
        elif op.startswith("v_permlane") and "swap" in op:
            self.kind = "valu"; self.w = R([0, 1]); self.r = R([0, 1])
        elif op in ("v_add_co_u32", "v_sub_co_u32", "v_addc_co_u32", "v_subb_co_u32"):
            self.kind = "valu"; self.w = R([0, 1]); self.r = R(range(2, len(o)))
        elif op.startswith("v_"):
            self.kind = "valu"; self.w = R([0]); self.r = R(range(1, len(o)))
            if op.startswith("v_fmac") or op.startswith("v_pk_fmac") or op.startswith("v_dot2c") or op=="v_writelane_b32":
                self.r += self.w
            if "dpp" in self.mods or "row_" in self.mods or "quad_perm" in self.mods or "wave_" in self.mods:
                self.dpp = True
        elif op.startswith("ds_read") or op.startswith("ds_bpermute") or op.startswith("ds_swizzle"):
            self.kind = "ds"; self.w = R([0]); self.r = R(range(1, len(o)))
        elif op.startswith("ds_"):
            self.kind = "ds"; self.r = R(range(len(o)))
        elif op.startswith("buffer_load") or op.startswith("global_load"):
            self.kind = "vmem"
            if " lds" in (" " + self.mods) or "_lds_" in op:
                self.r = R(range(len(o))) + [("s", "m0")]; self.dma = True
            else:
                self.w = R([0]); self.r = R(range(1, len(o)))
        elif op.startswith("buffer_store") or op.startswith("global_store"):
            self.kind = "vmem"; self.r = R(range(len(o))); self.store = True
            self.data = R([0]) if op.startswith("buffer") else R([1])
        elif op.startswith("buffer_atomic") or op.startswith("global_atomic"):
            self.kind = "vmem"; self.r = R(range(len(o)))
            if "sc0" in self.mods: self.w = R([0])
        elif op in ("buffer_wbl2", "buffer_inv"):
            self.kind = "vmem"
        elif op.startswith("s_load") or op.startswith("s_buffer_load") or op in ("s_memtime", "s_memrealtime"):
            self.kind = "smem"; self.w = R([0]); self.r = R(range(1, len(o)))
        elif op.startswith("s_cmp") or op.startswith("s_bitcmp"):
            self.kind = "salu"; self.r = R(range(len(o)))
        elif op in ("s_waitcnt", "s_barrier", "s_nop", "s_endpgm", "s_setprio", "s_sleep", "s_branch") or op.startswith("s_cbranch"):
            self.kind = "ctl"
        elif op.startswith("s_"):
            self.kind = "salu"; self.w = R([0]); self.r = R(range(1, len(o)))
            if op in ("s_addk_i32", "s_mulk_i32"): self.r += self.w
            if "saveexec" in op: self.w += [("s", "exec")]; self.r += [("s", "exec")]
        else:
            raise ValueError("unknown op " + op)
        if op == "v_cndmask_b32" and len(o) == 3:
            self.r += [("s", "vcc")]
    def states(self):
        if self.kind in ("label", "raw"): return 0
        if self.op == "s_nop": return int(self.ops[0]) + 1
        return 1

def required_gap(p, c):
    need = 0
    pw = set(p.w); cr = set(c.r); cw = set(c.w)
    if p.kind == "valu":
        vw = {x for x in pw if x[0] in "va"}
        sw = {x for x in pw if x[0] == "s"}
        if c.kind == "mfma" and vw & cr: need = max(need, 2)
        if c.kind == "mfma" and ("s", "exec") in pw: need = max(need, 4)
        if c.op in ("v_readfirstlane_b32", "v_readlane_b32") and vw & cr: need = max(need, 1)
        if c.op.startswith("v_permlane") and vw & cr: need = max(need, 2)
        if getattr(c, "dpp", False) and vw & cr: need = max(need, 2)
        if p.op in TRANS and c.kind in ("valu",) and c.op not in TRANS and vw & cr: need = max(need, 1)
        if p.op in TRANS and c.kind in ("mfma","vmem","ds") and vw & cr: need = max(need, 2 if c.kind=="mfma" else 1)
        if sw:
            if c.kind == "vmem" and sw & cr: need = max(need, 5)
            if c.kind == "valu" and sw & cr:
                need = max(need, 4 if c.op in ("v_readlane_b32", "v_writelane_b32") else 2)
            if c.kind == "salu" and sw & cr: need = max(need, 1)
            if ("s", "exec") in sw and c.op in ("v_readfirstlane_b32", "v_readlane_b32", "v_writelane_b32"): need = max(need, 4)
            if ("s", "exec") in sw and c.op.startswith("v_permlane"): need = max(need, 4)
            if ("s", "exec") in sw and getattr(c, "dpp", False): need = max(need, 5)
        if ("op_sel" in p.mods or "sdwa" in p.op or "dst_sel" in p.mods) and c.kind == "valu" and vw & (cr | cw): need = max(need, 1)
    if p.kind == "salu" and ("s", "m0") in pw and getattr(c, "dma", False): need = max(need, 1)
    if p.kind == "mfma":
        n = p.passes
        big = {4: 8, 8: 12}[n]; ovl = {4: 6, 8: 10}[n]; war = {4: 3, 8: 7}[n]
        if c.kind == "mfma":
            if pw & (set(c.ra) | set(c.rb)): need = max(need, big)
            if pw & set(c.rc):
                if not (c.rc == p.w and c.passes == p.passes): need = max(need, ovl)
            elif pw & cw:
                need = max(need, ovl)
        elif c.kind in ("valu", "vmem", "ds"):
            if pw & (cr | cw): need = max(need, big)
        if c.kind == "valu" and set(p.rc) & cw: need = max(need, war)
    if getattr(p, "store", False) and ("x4" in p.op or "x3" in p.op):
        if set(p.data) & cw: need = max(need, 2 if c.kind == "valu" else 1)
    return need

MAXGAP = 12

class Asm:
    def __init__(self):
        self.ins = []
        self.nlabel = 0
    def __call__(self, op, *ops, mods="", ann=None, comment=""):
        i = Ins(op, [str(x) for x in ops], mods, ann, comment)
        self.add(i)
        return i
    def add(self, i):
        if i.kind not in ("label", "raw"):
            need_pad = 0; dist = 0
            for p in reversed(self.ins):
                if p.kind in ("label", "raw"):
                    continue
                if p.op in ("s_branch", "s_endpgm"):
                    break
                g = required_gap(p, i)
                if g > dist: need_pad = max(need_pad, g - dist)
                dist += p.states()
                if dist >= MAXGAP: break
            while need_pad > 0:
                n = min(need_pad, 16)
                self.ins.append(Ins("s_nop", [str(n - 1)], comment="auto hazard pad"))
                need_pad -= n
        self.ins.append(i)
    def label(self, name=None):
        if name is None:
            name = f"L{self.nlabel}"; self.nlabel += 1
        self.ins.append(Ins("label", [name]))
        return name
    def newlabel(self, base="L"):
        self.nlabel += 1
        return f"{base}_{self.nlabel}"
    def raw(self, t):
        self.ins.append(Ins("raw", [t]))
    def text(self):
        return "\n".join(i.text() for i in self.ins) + "\n"

M32 = 0xFFFFFFFF
def _imm(tok):
    tok = tok.strip()
    try:
        return int(tok, 0) & M32
    except ValueError:
        return None

class TraceError(Exception):
    pass

def trace(ins, entry, ctx, policy=None, maxlen=3000000):
    labels = {i.ops[0]: n for n, i in enumerate(ins) if i.kind == "label"}
    pc = labels[entry]
    sg = {2: ctx["wg"]}
    scc = None
    out = []
    cnt = {}
    def val(tok):
        r = regs_of(tok)
        if r:
            if len(r) == 1 and r[0][0] == "s": return sg.get(r[0][1])
            return None
        return _imm(tok)
    while True:
        i = ins[pc]; pc += 1
        if i.kind in ("label", "raw"): continue
        out.append(i)
        if len(out) > maxlen: raise TraceError("trace too long")
        op = i.op
        if op == "s_endpgm": return out
        if op == "s_branch": pc = labels[i.ops[0]]; continue
        if op in ("s_cbranch_scc0", "s_cbranch_scc1"):
            if scc is None:
                if policy is None: raise TraceError(f"branch on unknown scc: {i.text()}")
                cnt[id(i)] = cnt.get(id(i), 0) + 1
                if policy(i, cnt[id(i)]): pc = labels[i.ops[0]]
                continue
            if (scc == 1) == (op == "s_cbranch_scc1"): pc = labels[i.ops[0]]
            continue
        if op.startswith("s_cbranch"):
            cnt[id(i)] = cnt.get(id(i), 0) + 1
            if policy and policy(i, cnt[id(i)]): pc = labels[i.ops[0]]
            continue
        if i.kind == "valu" or i.kind == "smem":
            for w in i.w:
                if w[0] == "s": sg[w[1]] = None
            if "val" in i.ann and i.w: sg[i.w[0][1]] = i.ann["val"](ctx) & M32
            continue
        if i.kind != "salu": continue
        o = i.ops
        if op.startswith("s_cmp"):
            a, b = val(o[0]), val(o[1])
            if a is None or b is None: scc = None; continue
            if op.endswith("i32"):
                a = a - (1 << 32) if a >> 31 else a; b = b - (1 << 32) if b >> 31 else b
            c = op.split("_")[2]
            scc = int({"eq": a == b, "lg": a != b, "lt": a < b, "gt": a > b, "le": a <= b, "ge": a >= b}[c])
            continue
        if op.startswith("s_bitcmp"):
            a, b = val(o[0]), val(o[1])
            if a is None or b is None: scc = None; continue
            bit = (a >> (b & 31)) & 1
            scc = int(bit == (1 if "bitcmp1" in op else 0)); continue
        dst = regs_of(o[0])
        if len(dst) != 1:
            for d in dst: sg[d[1]] = None
            if op not in ("s_mov_b64",): scc = None
            continue
        d = dst[0][1]
        a = val(o[1]) if len(o) > 1 else None
        b = val(o[2]) if len(o) > 2 else None
        r = None; nscc = "keep"
        if op in ("s_mov_b32", "s_movk_i32"): r = a
        elif op == "s_addk_i32":
            x = sg.get(d); r = None if x is None else (x + a) & M32; nscc = None
        elif op == "s_cselect_b32":
            r = None if scc is None else (a if scc else b)
        elif a is None or b is None:
            r = None; nscc = None
        elif op in ("s_add_u32",): r = (a + b) & M32; nscc = int(a + b > M32)
        elif op in ("s_add_i32",): r = (a + b) & M32; nscc = None
        elif op in ("s_sub_u32",): r = (a - b) & M32; nscc = int(a < b)
        elif op in ("s_sub_i32",): r = (a - b) & M32; nscc = None
        elif op == "s_mul_i32": r = (a * b) & M32
        elif op == "s_lshl_b32": r = (a << (b & 31)) & M32; nscc = int(r != 0)
        elif op == "s_lshr_b32": r = a >> (b & 31); nscc = int(r != 0)
        elif op == "s_and_b32": r = a & b; nscc = int(r != 0)
        elif op == "s_or_b32": r = a | b; nscc = int(r != 0)
        elif op == "s_xor_b32": r = a ^ b; nscc = int(r != 0)
        elif op == "s_min_u32": r = min(a, b); nscc = None
        elif op == "s_max_u32": r = max(a, b); nscc = None
        elif op == "s_mul_hi_u32": r = (a * b) >> 32
        elif op == "s_lshl1_add_u32": r = ((a << 1) + b) & M32; nscc = None
        elif op == "s_lshl2_add_u32": r = ((a << 2) + b) & M32; nscc = None
        elif op == "s_lshl3_add_u32": r = ((a << 3) + b) & M32; nscc = None
        elif op == "s_lshl4_add_u32": r = ((a << 4) + b) & M32; nscc = None
        elif op == "s_bfe_u32": r = (a >> (b & 31)) & ((1 << ((b >> 16) & 0x7f)) - 1); nscc = None
        else:
            r = None; nscc = None
        sg[d] = r
        if nscc != "keep": scc = nscc

def check_trace(tr, name=""):
    errs = []
    win = []
    for idx, c in enumerate(tr):
        dist = 0
        for p in reversed(win):
            g = required_gap(p, c)
            if g > dist:
                errs.append(f"[{name}] HAZARD need {g} have {dist}: {p.text().strip()}  ->  {c.text().strip()}")
            dist += p.states()
            if dist >= MAXGAP: break
        win.append(c)
        if len(win) > 16: win.pop(0)
    vm = []; lg = []
    pend = {}
    smem_out = False
    nbar = 0
    for c in tr:
        if c.op == "s_waitcnt":
            txt = " ".join(c.ops) + " " + c.mods
            m = re.search(r"vmcnt\((\d+)\)", txt)
            if m:
                n = int(m.group(1))
                while len(vm) > n:
                    p = vm.pop(0)
                    for r in p.w:
                        if pend.get(r) is p: del pend[r]
            m = re.search(r"lgkmcnt\((\d+)\)", txt)
            if m:
                n = int(m.group(1))
                if n > 0 and any(p.kind == "smem" for p in lg):
                    errs.append(f"[{name}] counted lgkmcnt with smem outstanding: {c.text()}")
                while len(lg) > n:
                    p = lg.pop(0)
                    for r in p.w:
                        if pend.get(r) is p: del pend[r]
            continue
        if c.op == "s_barrier":
            nbar += 1
            if c.ann.get("abar"):
                issued = sum(1 for x in tr[:0])
                out_half = sum(1 for p in vm if p.ann.get("half"))
                if out_half > 16: errs.append(f"[{name}] DMA half-round not landed at attention barrier ({out_half} outstanding)")
        for r in list(c.r) + list(c.w):
            if r in pend:
                p = pend[r]
                if r in c.w and r not in c.r and c.kind == p.kind and c.kind in ("ds", "vmem"):
                    continue
                errs.append(f"[{name}] WAITCNT: {c.text().strip()} touches {r} pending from {p.text().strip()}")
                del pend[r]
        if c.kind == "vmem":
            vm.append(c)
            if len(vm) > 63: errs.append(f"[{name}] vmcnt overflow (>63 outstanding) at {c.text().strip()}")
            for r in c.w: pend[r] = c
        elif c.kind in ("ds", "smem"):
            lg.append(c)
            if len(lg) > 15 and c.kind == "ds":
                pass
            for r in c.w: pend[r] = c
    return nbar, errs
```

```python
from asmlib import *

NAME = "gated_mix__compressed_kv_cla__ssm_conv_h3__prompt"
KA = dict(x=0, ckv=8, wq=16, wuk=24, wuv=32, wo=40, bq=48, bk=56, bv=64, shk=72, ssmk=80, ssmd=88, gw=96, out=104, dbg=112, ws=120)
SZ = dict(x=2048*640*2, ckv=2048*512*2, wq=640*4096*2, wuk=512*4096*2, wuv=512*4096*2, wo=4096*640*2,
          bk=2048*640*2, bv=2048*640*2, shk=640*4*2, ssmk=640*2048*2, ssmd=640*2, gw=640*2, out=2048*640*2, ws=268435456, dbg=256)
MB = 1 << 20
WS_KV = 0
WS_CTX = 40 * MB
WS_WOF = 64 * MB
WS_UT = 72 * MB
WS_Y2T = 76 * MB
WS_FL2 = 82 * MB
WS_FLG = 81 * MB
WS_G = 80 * MB

MF32 = "v_mfma_f32_32x32x16_bf16"
MF16 = "v_mfma_f32_16x16x32_bf16"

class LdsQ:
    def __init__(self, a, state=None):
        self.a = a
        self.q = list(state) if state else []
    def issue(self, op, *ops, mods=""):
        i = self.a(op, *ops, mods=mods)
        self.q.append(frozenset(i.w))
        return i
    def need(self, *operands):
        regs = set()
        for o in operands: regs |= set(regs_of(o))
        last = -1
        for n, w in enumerate(self.q):
            if w & regs: last = n
        if last >= 0:
            rem = min(len(self.q) - 1 - last, 15)
            self.a("s_waitcnt", f"lgkmcnt({rem})")
            self.q = self.q[len(self.q) - rem:] if rem else []
    def drain(self):
        if self.q:
            self.a("s_waitcnt", "lgkmcnt(0)")
        self.q = []

def srd(a, d, base_pair, nbytes, off=None):
    if off:
        a("s_add_u32", S(d), S(base_pair), hex(off))
        a("s_addc_u32", S(d + 1), S(base_pair + 1), 0)
    else:
        a("s_mov_b32", S(d), S(base_pair))
        a("s_mov_b32", S(d + 1), S(base_pair + 1))
    a("s_mov_b32", S(d + 2), hex(nbytes))
    a("s_mov_b32", S(d + 3), "0x20000")

def kernel_begin(a, name):
    a.raw(f".globl {name}")
    a.raw(".p2align 8")
    a.raw(f".type {name},@function")
    a.label(name)

def kd(name, vgpr, sgpr=102):
    acc = (vgpr + 3) // 4 * 4
    return f""".p2align 6
.amdhsa_kernel {name}
  .amdhsa_next_free_vgpr {vgpr}
  .amdhsa_next_free_sgpr {sgpr}
  .amdhsa_accum_offset {acc}
  .amdhsa_group_segment_fixed_size 0
  .amdhsa_kernarg_size 128
  .amdhsa_user_sgpr_count 2
  .amdhsa_user_sgpr_kernarg_segment_ptr 1
  .amdhsa_system_sgpr_workgroup_id_x 1
  .amdhsa_float_denorm_mode_32 3
.end_amdhsa_kernel
"""

class Stamps:
    def __init__(self, a, enable, base=64):
        self.a = a; self.en = enable; self.base = base; self.n = 0
    def stamp(self, real=False):
        if not self.en: return
        a = self.a
        a("s_memrealtime" if (real or getattr(self, "allreal", False)) else "s_memtime", S(self.base + 2 * self.n, 2))
        a("s_waitcnt", "lgkmcnt(0)")
        self.n += 1
    def flush(self, wave_sgpr, wg=0, vtmp=(0, 1), slot=0):
        if not self.en: return
        a = self.a
        skip = a.newlabel("stamp_skip")
        if wg >= 0:
            a("s_cmp_lg_u32", "s2", wg)
            a("s_cbranch_scc1", skip)
        a("s_load_dwordx2", S(96, 2), S(0, 2), KA["ws"])
        a("s_waitcnt", "lgkmcnt(0)")
        a("s_add_u32", "s96", "s96", hex(100 * (1 << 20) + slot * 512))
        a("s_addc_u32", "s97", "s97", 0)
        a("s_mov_b32", "s98", 512 if wg >= 0 else 512 * 256)
        a("s_mov_b32", "s99", "0x20000")
        a("s_lshl_b32", "s100", wave_sgpr, 6)
        if wg < 0:
            a("s_lshl_b32", "s101", "s2", 9)
            a("s_add_u32", "s100", "s100", "s101")
        a("v_mov_b32", V(vtmp[0]), "s100")
        for i in range(self.n):
            a("v_mov_b32", V(vtmp[1]), S(self.base + 2 * i))
            a("buffer_store_dword", V(vtmp[1]), V(vtmp[0]), S(96, 4), 0, mods=f"offen offset:{4*i}")
            a("s_waitcnt", "vmcnt(0)")
        a.label(skip)

class VmQ:
    def __init__(self, a, state=None):
        self.a = a; self.q = list(state) if state else []
    def issue(self, tag, op, *ops, mods=""):
        self.q.append(tag)
        return self.a(op, *ops, mods=mods)
    def need(self, *tags):
        last = -1
        for n, t in enumerate(self.q):
            if t in tags: last = n
        if last >= 0:
            rem = len(self.q) - 1 - last
            assert rem <= 63
            self.a("s_waitcnt", f"vmcnt({rem})")
            self.q = self.q[last + 1:]
WS_STAMP = 100 * MB
```

```python
from common import *
from side import *
import k4
import math

QSCALE = math.log2(math.e) / math.sqrt(128.0)
NEG = 0xff000000
SLOT = 32768
K0OFF = 65536 + 57344
EPT = 119 * 1024
XCH = 131072
R_O = 16; R_Q = 80; R_S = [112, 128]; R_C = 144; R_P = [160, 168]; R_F = 176; R_T = 208; R_L = [216, 218]; R_X = 220
vLANE = 2; vKV = 3; vDMA = 4; vST = 5; vQI = 6
VA = [228, 229, 230, 231]; VB = [232, 233, 234, 235]; VX = [236, 237, 238, 239]; VW = [240, 241, 242, 243]
AL = [244, 245]; BL = [246, 247]; AA = [248, 249]; BA = [250, 251]; VST = [252, 253]; AA2 = [254, 255]
NV = 256
SR_CKV = 16; SR_W = 20; SR_KV = 24; SR_CTX = 44; SR_X = 52; SR_WQ = 56; SR_DBG = 60; SR_FL = 92

def opt(abl, key, default):
    for x in abl:
        if x.startswith(key) and x[len(key):].lstrip("-").isdigit(): return int(x[len(key):])
    return default

def gen_k12(a, name="main_kernel", abl=()):
    kernel_begin(a, name)
    done = a.newlabel("k12_done")
    a("s_cmp_ge_u32", "s2", 256)
    a("s_cbranch_scc1", done)
    st_ = Stamps(a, "stamp" in abl)
    st_.allreal = "rt" in abl
    st_.stamp(); st_.stamp(real=True)
    a("s_load_dwordx4", S(4, 4), S(0, 2), KA["x"])
    a("s_load_dwordx4", S(8, 4), S(0, 2), KA["wuk"])
    a("s_load_dwordx2", S(48, 2), S(0, 2), KA["wq"])
    a("s_load_dwordx4", S(36, 4), S(0, 2), KA["dbg"])
    a("v_lshrrev_b32", "v1", 6, "v0")
    a("v_and_b32", "v2", 63, "v0")
    a("v_readfirstlane_b32", "s3", "v1", ann={"val": lambda c: c["wave"]})
    a("s_and_b32", "s12", "s2", 7)
    a("s_lshr_b32", "s13", "s2", 3)
    a("s_lshr_b32", "s14", "s13", 3)
    a("s_lshl_b32", "s12", "s12", 2)
    a("s_add_u32", "s12", "s12", "s14")
    a("s_and_b32", "s13", "s13", 7)
    a("s_lshr_b32", "s14", "s3", 2)
    a("s_and_b32", "s15", "s3", 3)
    t0, t1, t2, t3 = 8, 9, 10, 11
    a("v_lshrrev_b32", V(t1), 4, "v2")
    a("v_and_b32", V(t2), 7, "v2")
    a("v_xor_b32", V(t1), V(t1), V(t2))
    a("v_xor_b32", V(t2), 4, V(t1))
    a("v_lshlrev_b32", V(t1), 4, V(t1))
    a("v_lshlrev_b32", V(t2), 4, V(t2))
    a("v_lshrrev_b32", V(t3), 3, "v2")
    a("s_lshl_b32", "s28", "s13", 8)
    a("s_lshl_b32", "s29", "s3", 5)
    a("s_add_u32", "s28", "s28", "s29")
    a("v_add_u32", V(t0), "s28", V(t3))
    a("v_lshlrev_b32", V(t0), 10, V(t0))
    for i in range(4):
        a("v_add3_u32", V(VA[i]), V(t0), V(t1 if i % 2 == 0 else t2), 0)
        if i: a("v_add_u32", V(VA[i]), i * 8192 - i * 1024, V(VA[i]))
    w0, w1 = 12, 13
    a("v_bfe_u32", V(t0), "v2", 2, 2)
    a("v_lshlrev_b32", V(t0), 13, V(t0))
    a("v_lshrrev_b32", V(w0), 4, "v2")
    a("v_lshl_add_u32", V(t0), V(w0), 6, V(t0))
    a("s_lshl_b32", "s28", "s12", 8)
    a("v_add_u32", V(t0), "s28", V(t0))
    a("v_and_b32", V(w0), 3, "v2")
    a("v_xor_b32", V(w1), 2, V(w0))
    a("v_lshl_add_u32", V(w0), V(w0), 4, V(t0))
    a("v_lshl_add_u32", V(w1), V(w1), 4, V(t0))
    a("s_lshl_b32", "s28", "s15", 17)
    for i in range(4):
        a("s_add_u32", "s29", "s28", i * 32768 - i * 1024)
        a("v_add_u32", V(VB[i]), "s29", V(w0 if i < 2 else w1))
    a("s_lshl_b32", "s30", "s3", 12)
    a("s_waitcnt", "lgkmcnt(0)")
    srd(a, SR_CKV, 6, SZ["ckv"])
    a("s_cmp_eq_u32", "s14", 0)
    a("s_cselect_b32", S(SR_W), "s8", "s10")
    a("s_cselect_b32", S(SR_W + 1), "s9", "s11")
    a("s_mov_b32", S(SR_W + 2), hex(SZ["wuk"]))
    a("s_mov_b32", S(SR_W + 3), "0x20000")
    vm = VmQ(a)
    entries = []
    for s in range(8): entries += [("A", s), ("B", s)]
    for i in range(5): entries += [("X", 2 * i), ("W", i), ("X", 2 * i + 1)]
    eidx = {e: n for n, e in enumerate(entries)}
    slot_of = lambda e: (eidx[e] % 5) * SLOT
    def dma(vmq, e):
        kind, s = e
        vv, sr, so = {"A": (VA, SR_CKV, s * 128), "B": (VB, SR_W, s * 64 * 8192), "X": (VX, SR_X, s * 128), "W": (VW, SR_WQ, s * 128 * 8192)}[kind]
        def mk(i):
            def f():
                if i == 0:
                    a("s_add_u32", "m0", "s30", slot_of(e))
                    a("s_mov_b32", "s32", so)
                vmq.issue(e, "buffer_load_dwordx4", V(vv[i]), S(sr, 4), "s32", mods=f"offen offset:{i*1024} lds")
            return f
        return [mk(i) for i in range(4)]
    for e in entries[0:2]:
        for f in dma(vm, e): f()
    srd(a, SR_KV, 38, 32 * MB)
    srd(a, SR_CTX, 38, 2048 * 4096 * 2, off=WS_CTX)
    srd(a, SR_X, 4, SZ["x"])
    srd(a, SR_WQ, 48, SZ["wq"])
    srd(a, SR_DBG, 36, 256)
    srd(a, SR_FL, 38, 32768, off=WS_FL2)
    ne = a.newlabel("noepoch")
    a("v_mov_b32", V(220), 0)
    a("v_mov_b32", V(222), 0); a("v_mov_b32", V(223), 0)
    a("s_lshl_b32", "s28", "s2", 3)
    a("s_add_u32", "s28", "s28", "s3")
    a("s_cmp_lg_u32", "s28", 4)
    a("s_cbranch_scc1", ne)
    a("s_mov_b64", "exec", 1)
    a("s_movk_i32", "s28", 8192)
    a("buffer_load_dword", V(222), V(220), S(SR_FL, 4), "s28", mods="offen sc1")
    a("s_waitcnt", "vmcnt(0)")
    a("v_add_u32", V(222), 1, V(222))
    a("v_mov_b32", V(223), 1)
    a("buffer_store_dwordx2", V(222, 2), V(220), S(SR_DBG, 4), 0, mods="offen sc1")
    a("buffer_store_dword", V(222), V(220), S(SR_FL, 4), "s28", mods="offen sc1")
    a("s_mov_b64", "exec", -1)
    a.label(ne)
    a("s_sub_u32", "s38", 15, "s13")
    a("s_cmp_eq_u32", "s14", 0)
    a("s_cselect_b32", "s39", "s38", "s13")
    a("s_lshl_b32", "s40", "s39", 2)
    a("s_add_u32", "s40", "s40", "s15")
    a("s_lshl_b32", "s28", "s40", 5)
    a("v_add_u32", V(t0), "s28", V(t3))
    a("v_mul_u32_u24", V(t0), 1280, V(t0))
    for i in range(4):
        a("v_add3_u32", V(VX[i]), V(t0), V(t1 if i % 2 == 0 else t2), 0)
        if i: a("v_add_u32", V(VX[i]), i * 8 * 1280 - i * 1024, V(VX[i]))
    a("s_lshl_b32", "s28", "s3", 17)
    for i in range(4):
        a("s_add_u32", "s29", "s28", i * 32768 - i * 1024)
        a("v_add_u32", V(VW[i]), "s29", V(w0 if i < 2 else w1))
    for e in entries[2:4]:
        for f in dma(vm, e): f()
    touches = []
    if "notouch" not in abl:
        tv = 14; TD = [216, 217, 218, 219]
        a("v_lshrrev_b32", V(t0), 1, "v2")
        a("v_and_b32", V(tv), 1, "v2")
        a("s_lshl_b32", "s29", "s13", 6); a("s_lshl_b32", "s33", "s15", 5); a("s_add_u32", "s29", "s29", "s33")
        a("v_add_u32", V(TD[0]), "s29", V(t0))
        a("v_lshlrev_b32", V(TD[0]), 13, V(TD[0]))
        a("v_lshl_add_u32", V(TD[0]), V(tv), 7, V(TD[0]))
        a("s_lshl_b32", "s33", "s12", 8)
        a("v_add_u32", V(TD[0]), "s33", V(TD[0]))
        a("s_lshl_b32", "s29", "s2", 13)
        a("v_lshlrev_b32", V(TD[1]), 7, "v2")
        a("v_add_u32", V(TD[1]), "s29", V(TD[1]))
        a("s_mul_i32", "s29", "s2", 10240); a("s_and_b32", "s33", "s3", 1); a("s_lshl_b32", "s33", "s33", 13); a("s_add_u32", "s29", "s29", "s33")
        a("v_lshlrev_b32", V(TD[2]), 7, "v2")
        a("v_add_u32", V(TD[2]), "s29", V(TD[2]))
        a("s_mul_i32", "s29", "s13", 80); a("s_lshl_b32", "s33", "s15", 5); a("s_add_u32", "s29", "s29", "s33")
        a("v_add_u32", V(TD[3]), "s29", V(t0))
        a("v_lshlrev_b32", V(TD[3]), 13, V(TD[3]))
        a("v_lshl_add_u32", V(TD[3]), V(tv), 7, V(TD[3]))
        a("s_lshl_b32", "s33", "s12", 8)
        a("v_add_u32", V(TD[3]), "s33", V(TD[3]))
        touches = [(0, 0, "s15", "s_cmp_lt_u32", 2, TD[0], SR_W, None), (0, 0, "s3", "s_cmp_eq_u32", 2, TD[1], SR_CKV, None),
                   (2, 30, "s15", "s_cmp_lt_u32", 2, TD[2], SR_X, 0), (2, 30, "s15", "s_cmp_lt_u32", 3, TD[3], SR_WQ, 1)]
    def touch(k):
        (_, _, sg, cmp_, val, reg, sr_, _) = touches[k]
        def f():
            sk = a.newlabel("tskip")
            a(cmp_, sg, val)
            a("s_cbranch_scc0", sk)
            a("buffer_load_dword", V(208 + k), V(reg), S(sr_, 4), 0, mods="offen")
            a.label(sk)
        return f
    G = 1
    a("v_and_b32", V(t0), 15, "v2")
    a("v_lshrrev_b32", V(G), 4, "v2")
    a("v_lshlrev_b32", V(t3), 2, V(G))
    a("v_sub_u32", V(vQI), V(t0), V(t3))
    a("v_lshlrev_b32", V(7), 7, V(t0))
    a("v_bfe_u32", V(t1), "v2", 1, 3)
    a("v_xor_b32", V(t1), V(t1), V(G))
    for ks in range(2):
        a("v_xor_b32", V(AL[ks]), 4 * ks, V(t1))
        a("v_lshl_add_u32", V(AL[ks]), V(AL[ks]), 4, V(7))
    a("v_lshlrev_b32", V(t1), 11, V(G))
    a("v_bfe_u32", V(t0), "v2", 2, 2)
    a("v_lshl_add_u32", V(t1), V(t0), 6, V(t1))
    a("v_and_b32", V(t0), 3, "v2")
    a("v_lshl_add_u32", V(t1), V(t0), 3, V(t1))
    a("v_bfe_u32", V(t0), "v2", 4, 1)
    a("v_lshl_add_u32", V(BL[0]), V(t0), 5, V(t1))
    a("v_xor_b32", V(BL[1]), 32, V(BL[0]))
    a("s_lshr_b32", "s34", "s15", 1)
    a("s_lshl_b32", "s34", "s34", 14)
    a("s_lshl_b32", "s35", "s14", 14)
    a("s_and_b32", "s29", "s15", 1)
    a("s_lshl_b32", "s29", "s29", 9)
    a("s_add_u32", "s35", "s35", "s29")
    a("s_lshl_b32", "s28", "s12", 6)
    a("s_lshl_b32", "s29", "s13", 3)
    a("s_add_u32", "s28", "s28", "s29")
    a("s_lshr_b32", "s29", "s15", 1)
    a("s_lshl_b32", "s29", "s29", 2)
    a("s_add_u32", "s28", "s28", "s29")
    a("s_lshl_b32", "s28", "s28", 14)
    a("s_lshl_b32", "s29", "s14", 13)
    a("s_add_u32", "s28", "s28", "s29")
    a("s_and_b32", "s29", "s15", 1)
    a("s_add_u32", "s33", "s14", 11)
    a("s_lshl_b32", "s29", "s29", "s33")
    a("s_add_u32", "s28", "s28", "s29")
    a("v_lshlrev_b32", V(vKV), 4, "v2")
    a("v_add_u32", V(VST[0]), "s28", V(vKV))
    a("s_lshr_b32", "s29", 4096, "s14")
    a("v_add_u32", V(VST[1]), "s29", V(VST[0]))
    TOK = 16; WF = [48, 64]; ACC = 80; PK = 16
    tok = lambda kt: V(TOK + 4 * kt, 4)
    wf = lambda s, dt: V(WF[s] + 4 * dt, 4)
    accn = lambda kt, dt: ACC + 4 * (kt * 4 + dt)
    acc = lambda kt, dt: V(accn(kt, dt), 4)
    def kv_addr(s):
        a("s_add_u32", "s28", "s34", slot_of(("A", s)))
        a("s_add_u32", "s29", "s35", slot_of(("B", s)))
        for ks in range(2): a("v_add_u32", V(AA[ks]), "s28", V(AL[ks]))
        for p in range(2): a("v_add_u32", V(BA[p]), "s29", V(BL[p]))
    def rd_w(q, ks, dt, t):
        return lambda: q.issue("ds_read_b64_tr_b16", V(WF[ks] + 4 * dt + 2 * t, 2), V(BA[dt & 1]), mods=f"offset:{ks*8192 + t*1024 + (dt>>1)*256}")
    def rd_t(q, ks, kt):
        return lambda: q.issue("ds_read_b128", tok(kt), V(AA[ks]), mods=f"offset:{kt*2048}")
    BAR = 8
    def tail_reads(q):
        L = [(BAR, rd_w(q, 0, 0, 0)), (BAR, rd_w(q, 0, 0, 1)), (BAR + 1, rd_t(q, 0, 0)), (BAR + 1, rd_w(q, 0, 1, 0)),
             (BAR + 2, rd_w(q, 0, 1, 1)), (BAR + 2, rd_t(q, 0, 1)), (BAR + 3, rd_t(q, 0, 2))]
        L += [(BAR + 4, rd_w(q, 0, 2, 0)), (BAR + 5, rd_w(q, 0, 2, 1)), (BAR + 6, rd_w(q, 0, 3, 0)), (BAR + 7, rd_t(q, 0, 3)), (BAR + 8, rd_w(q, 0, 3, 1))]
        L += [(4 * kt + 3, rd_t(q, 0, kt)) for kt in range(4, 8)]
        return L
    kv_addr(0)
    st_.stamp()
    vm.need(("A", 0), ("B", 0))
    a("s_barrier")
    st_.stamp()
    q0 = LdsQ(a)
    for _, f in tail_reads(q0): f()
    vm_entry = list(vm.q); q_entry = list(q0.q)
    lblV = a.newlabel("kv_v"); lblQ = a.newlabel("qphase")
    a("s_cmp_eq_u32", "s14", 0)
    a("s_cbranch_scc0", lblV)
    for grp in range(2):
        if grp == 1: a.label(lblV)
        q = LdsQ(a, q_entry); vm = VmQ(a, vm_entry)
        for s in range(8):
            for ks in range(2):
                fill = [[] for _ in range(32)]
                if ks == 0:
                    for kt in range(8): fill[4 * kt + 3].append(rd_t(q, 1, kt))
                    n = 0
                    for dt in range(4):
                        for t in range(2):
                            fill[4 * n + 1].append(rd_w(q, 1, dt, t)); n += 1
                    for i, f in enumerate(dma(vm, entries[2 * s + 4])): fill[8 * i + 2].append(f)
                    if s == 5 and grp == 1:
                        def eld():
                            sk = a.newlabel("noeld")
                            a("s_cmp_lg_u32", "s3", 4)
                            a("s_cbranch_scc1", sk)
                            a("buffer_load_dwordx2", V(222, 2), V(220), S(SR_DBG, 4), 0, mods="offen sc1")
                            a.label(sk)
                        fill[0].append(eld)
                    for k, tch in enumerate(touches):
                        if tch[0] == s and tch[7] in (None, grp): fill[tch[1]].append(touch(k))
                else:
                    if s < 7:
                        for n, f in tail_reads(q): fill[n].append(f)
                        for i, f in enumerate(dma(vm, entries[2 * s + 5])): fill[BAR + 2 + 6 * i].append(f)
                    else:
                        for i, f in enumerate(dma(vm, entries[19]) + dma(vm, entries[20])): fill[BAR + 3 * i].append(f)
                for n in range(32):
                    kt, dt = n // 4, n % 4
                    if ks == 1 and n == BAR:
                        q.drain()
                        vm.need(entries[2 * s + 2], entries[2 * s + 3])
                        a("s_barrier")
                        if s < 7: kv_addr(s + 1)
                    q.need(tok(kt), wf(ks, dt))
                    c = acc(kt, dt) if (s or ks) else "0"
                    if grp == 0: a(MF16, acc(kt, dt), wf(ks, dt), tok(kt), c)
                    else: a(MF16, acc(kt, dt), tok(kt), wf(ks, dt), c)
                    for f in fill[n]: f()
        for n in range(16):
            ksub, u = n // 4, n % 4
            if grp == 0:
                kt2, Tp = u // 2, u % 2
                b0 = accn(2 * ksub + kt2, 2 * Tp); b1 = accn(2 * ksub + kt2, 2 * Tp + 1)
            else:
                b0 = accn(2 * ksub, u); b1 = accn(2 * ksub + 1, u)
            P = PK + 4 * n
            a("v_cvt_pk_bf16_f32", V(P), V(b0), V(b0 + 1))
            a("v_cvt_pk_bf16_f32", V(P + 1), V(b0 + 2), V(b0 + 3))
            a("v_cvt_pk_bf16_f32", V(P + 2), V(b1), V(b1 + 1))
            a("v_cvt_pk_bf16_f32", V(P + 3), V(b1 + 2), V(b1 + 3))
        if grp == 0:
            a("s_branch", lblQ); vm_after = list(vm.q)
        else:
            assert vm.q == vm_after
    a.label(lblQ)
    st_.stamp()
    QACC = 144; XF = [80, 96]; QW = 112
    qaccn = lambda dt, qt: QACC + 4 * (dt * 4 + qt)
    xf = lambda ks, qt: V(XF[ks] + 4 * qt, 4)
    qw = lambda dt: V(QW + 4 * dt, 4)
    a("s_xor_b32", "s34", "s30", 16384)
    a("s_lshl_b32", "s35", "s14", 9)
    def q_addr(s):
        a("s_add_u32", "s28", "s30", slot_of(("X", s)))
        a("s_add_u32", "s29", "s34", slot_of(("X", s)))
        for ks in range(2): a("v_add_u32", V(AA[ks]), "s28", V(AL[ks]))
        for ks in range(2): a("v_add_u32", V(AA2[ks]), "s29", V(AL[ks]))
        if s % 2 == 0:
            a("s_add_u32", "s28", "s35", slot_of(("W", s // 2)))
            for p in range(2): a("v_add_u32", V(BA[p]), "s28", V(BL[p]))
    q = LdsQ(a)
    def rq_w(s, ks, dt):
        def f():
            for t in range(2):
                q.issue("ds_read_b64_tr_b16", V(QW + 4 * dt + 2 * t, 2), V(BA[dt & 1]), mods=f"offset:{(s%2)*16384 + ks*8192 + t*1024 + (dt>>1)*256}")
        return f
    def rq_x(ks, qt):
        return lambda: q.issue("ds_read_b128", xf(ks, qt), V((AA if qt < 2 else AA2)[ks]), mods=f"offset:{(qt%2)*2048}")
    def kvstore(n):
        def f():
            ksub, u = n // 4, n % 4
            if "nokvst" in abl: return
            a("s_mov_b32", "s33", ksub * 16384)
            vm.issue("st", "buffer_store_dwordx4", V(PK + 4 * n, 4), V(VST[u // 2]), S(SR_KV, 4), "s33", mods=f"offen offset:{(u%2)*1024}" + ("" if "plainst" in abl else " nt" if "ntst" in abl else " sc1"))
        return f
    q_addr(0)
    for f in [rq_w(0, 0, 0), rq_x(0, 0), rq_x(0, 1), rq_x(0, 2), rq_x(0, 3), rq_w(0, 0, 1), rq_w(0, 0, 2), rq_w(0, 0, 3)]: f()
    QBAR = 5
    SPS = opt(abl, "sps", 3)
    SIG = opt(abl, "sig", 7)
    POLL = opt(abl, "poll", 8)
    a("s_lshr_b32", "s42", "s38", 1)
    a("s_lshl_b32", "s42", 2, "s42")
    a("s_sub_u32", "s42", "s42", 1)
    a("s_lshl_b32", "s29", "s12", 7)
    a("v_and_b32", V(10), 7, "v2")
    a("v_lshlrev_b32", V(10), 2, V(10))
    a("v_add_u32", V(10), "s29", V(10))
    def pollload():
        a("buffer_load_dword", V(11), V(10), S(SR_FL, 4), 0, mods="offen sc1")
    def idma():
        L = []
        def k0():
            a("s_lshl_b32", "s28", "s12", 20)
            a("s_lshr_b32", "s29", "s30", 2)
            a("s_add_u32", "s43", "s28", "s29")
            a("s_add_u32", "m0", "s29", K0OFF)
            a("s_add_u32", "s28", "s28", "s30")
            a("buffer_load_dwordx4", V(vKV), S(SR_KV, 4), "s43", mods="offen sc1 lds")
        L.append(k0)
        for k in range(3):
            for i in range(4):
                def f(k=k, i=i):
                    if i == 0:
                        a("s_add_u32", "m0", "s30", k * 32768)
                        a("s_add_u32", "s43", "s28", 8192 + k * 32768)
                    a("buffer_load_dwordx4", V(vKV), S(SR_KV, 4), "s43", mods=f"offen offset:{i*1024} sc1 lds")
                L.append(f)
        return L
    nst = 0
    for s in range(10):
        for ks in range(2):
            fill = [[] for _ in range(16)]
            if ks == 0:
                for qt in range(4): fill[2 * qt].append(rq_x(1, qt))
                for dt in range(4): fill[4 * dt + 3].append(rq_w(s, 1, dt))
                for k in range(SPS):
                    if nst < 16: fill[1 + (k * 14) // SPS].append(kvstore(nst)); nst += 1
                if s >= 8:
                    for n_ in range(16):
                        for z in range(2): fill[n_].append(lambda r=R_O + 32 * (s - 8) + 2 * n_ + z: a("v_mov_b32", V(r), 0))
                if s == 7:
                    for n_ in range(16): fill[n_].append(lambda r=228 + n_: a("v_mov_b32", V(r), 0))
            else:
                if s < 9:
                    fill[QBAR].append(rq_w(s + 1, 0, 0))
                    for qt in range(4): fill[QBAR + 1 + qt].append(rq_x(0, qt))
                    for dt in range(1, 4): fill[max(4 * dt + 3, QBAR + 3)].append(rq_w(s + 1, 0, dt))
                nx = []
                if s % 2 == 0 and s + 3 <= 9: nx = dma(vm, ("X", s + 3))
                if s % 2 == 1 and s + 3 <= 9: nx = dma(vm, ("X", s + 3)) + dma(vm, ("W", (s + 3) // 2))
                if s == 9: nx = idma()
                for i, f in enumerate(nx): fill[QBAR + (0 if s == 9 else 1) + (i * (15 - QBAR)) // len(nx)].append(f)
            for n in range(16):
                dt, qt = n // 4, n % 4
                if ks == 1 and n == QBAR:
                    q.drain()
                    need = [("X", s + 1), ("W", (s + 1) // 2)]
                    if s == SIG:
                        assert nst == 16
                        need.append("st")
                    vm.need(*need)
                    if s == 9:
                        skp = a.newlabel("skip_poll")
                        a("s_cmp_lg_u32", "s3", 4)
                        a("s_cbranch_scc1", skp)
                        a("s_mov_b32", "s41", 0)
                        a("s_waitcnt", "vmcnt(0)")
                        pl = a.label(a.newlabel("poll"))
                        a("v_cmp_eq_u32", S(28, 2), V(11), V(222), ann={"val": lambda c: 0xff})
                        a("s_and_b32", "s29", "s28", "s42")
                        a("s_cmp_eq_u32", "s29", "s42")
                        a("s_cbranch_scc1", skp)
                        a("s_sleep", 4)
                        pollload()
                        a("s_waitcnt", "vmcnt(0)")
                        a("s_add_u32", "s41", "s41", 1)
                        a("s_cmp_lt_u32", "s41", 1 << 19)
                        a("s_cbranch_scc1", pl)
                        a.label(skp)
                    a("s_barrier")
                    if s == POLL:
                        sk = a.newlabel("nopoll")
                        a("s_cmp_lg_u32", "s3", 4)
                        a("s_cbranch_scc1", sk)
                        pollload()
                        a.label(sk)
                    if s == SIG:
                        sk = a.newlabel("nosig"); ok = a.newlabel("epok")
                        a("s_cmp_lg_u32", "s3", 4)
                        a("s_cbranch_scc1", sk)
                        a("s_mov_b32", "s41", 0)
                        el = a.label(a.newlabel("eploop"))
                        a("v_readfirstlane_b32", "s29", V(223), ann={"val": lambda c: 1})
                        a("s_cmp_eq_u32", "s29", 1)
                        a("s_cbranch_scc1", ok)
                        a("s_sleep", 8)
                        a("buffer_load_dwordx2", V(222, 2), V(220), S(SR_DBG, 4), 0, mods="offen sc1")
                        a("s_waitcnt", "vmcnt(0)")
                        a("s_add_u32", "s41", "s41", 1)
                        a("s_cmp_lt_u32", "s41", 1 << 19)
                        a("s_cbranch_scc1", el)
                        a.label(ok)
                        a("s_lshl_b32", "s28", "s12", 7)
                        a("s_lshl_b32", "s29", "s13", 2)
                        a("s_add_u32", "s28", "s28", "s29")
                        a("s_mov_b64", "exec", 1)
                        a("buffer_store_dword", V(222), V(220), S(SR_FL, 4), "s28", mods="offen sc1")
                        a("s_mov_b64", "exec", -1)
                        a.label(sk)
                    if s < 9: q_addr(s + 1)
                q.need(qw(dt), xf(ks, qt))
                d = V(qaccn(dt, qt), 4)
                a(MF16, d, qw(dt), xf(ks, qt), d if (s or ks) else "0")
                for f in fill[n]: f()
    st_.stamp()
    Qn = lambda qt, T: R_Q + 4 * (qt * 4 + T)
    Q = lambda qt, T: V(Qn(qt, T), 4)
    a("v_mov_b32", V(12), hex(f32bits(QSCALE))); a("v_mov_b32", V(13), hex(f32bits(QSCALE)))
    a("s_add_u32", "s29", "s34", XCH)
    a("v_add_u32", V(8), "s29", V(vKV))
    a("s_add_u32", "s29", "s30", XCH)
    a("v_add_u32", V(9), "s29", V(vKV))
    def cvtq(dst, Tp, qt):
        for hf in range(2):
            b = qaccn(2 * Tp + hf, qt)
            for r_ in (0, 2): a("v_pk_mul_f32", V(b + r_, 2), V(b + r_, 2), V(12, 2))
            a("v_cvt_pk_bf16_f32", V(dst + 2 * hf), V(b), V(b + 1))
            a("v_cvt_pk_bf16_f32", V(dst + 2 * hf + 1), V(b + 2), V(b + 3))
    for qt in range(2):
        for Tp in range(2):
            d = QW + 4 * (qt * 2 + Tp)
            cvtq(d, Tp, 2 + qt)
            a("ds_write_b128", V(8), V(d, 4), mods=f"offset:{(qt*2+Tp)*1024}")
    a("s_lshl_b32", "s28", "s12", 20)
    a("s_lshl_b32", "s29", "s15", 13)
    a("s_add_u32", "s28", "s28", "s29")
    a("s_add_u32", "s28", "s28", 8192)
    a("v_add_u32", V(vDMA), "s28", V(vKV))
    a("s_lshl_b32", "s30", "s15", 13)
    a("s_add_u32", "s30", "s30", 3 * 32768)
    a("s_mov_b32", "s32", 3 * 32768)
    a("s_lshl_b32", "s33", "s38", 16)
    a("s_add_u32", "s33", "s33", 65536)
    a("s_lshl_b32", "s38", "s38", 1)
    a("s_mov_b32", "s39", 0)
    def adma(gate=False):
        def mk(i):
            def f():
                if i == 0 and gate:
                    a("s_cmp_lt_u32", "s32", "s33")
                    a("s_cselect_b32", S(SR_KV + 2), hex(32 * MB) if "zdma" not in abl else 0, 0)
                if i % 4 == 0:
                    a("s_add_u32", "m0", "s30", (i // 4) * 4096)
                    a("s_add_u32", "s35", "s32", (i // 4) * 4096)
                a("buffer_load_dwordx4", V(vDMA), S(SR_KV, 4), "s35", mods=f"offen offset:{(i%4)*1024} sc1 lds", ann={"half": 1})
                if i == 7:
                    a("s_add_u32", "s30", "s30", 32768)
                    a("s_and_b32", "s30", "s30", 131071)
                    a("s_add_u32", "s32", "s32", 32768)
            return f
        return [mk(i) for i in range(8)]
    a("s_mov_b32", "s28", hex(f32bits(QSCALE)))
    R_LM = [228, 236]; R_ONE = 244
    def zero_init():
        for i in range(16): a("v_mov_b32", V(R_C + i), 0)
        for i in range(4): a("v_mov_b32", V(R_ONE + i), "0x3f803f80")
    lg1 = a.newlabel("cv_g1"); lgd = a.newlabel("cv_done")
    a("s_cmp_eq_u32", "s14", 0)
    a("s_cbranch_scc0", lg1)
    for g in range(2):
        if g == 1: a.label(lg1)
        for qt in range(2):
            for Tp in range(2): cvtq(Qn(qt, 2 * g + Tp), Tp, qt)
        zero_init()
        a("s_waitcnt", "vmcnt(8) lgkmcnt(0)")
        a("s_barrier")
        for qt in range(2):
            for Tp in range(2):
                a("ds_read_b128", Q(qt, 2 * (1 - g) + Tp), V(9), mods=f"offset:{(qt*2+Tp)*1024}")
        if g == 0: a("s_branch", lgd)
    a.label(lgd)
    a("s_lshl_b32", "s28", "s40", 6)
    a("s_add_u32", "s28", "s28", "s12")
    a("s_lshl_b32", "s28", "s28", 12)
    a("v_add_u32", V(vST), "s28", V(vKV))
    a("s_mov_b32", "s42", hex(f32bits(2.0 ** 40)))
    a("s_mov_b32", "s43", hex(NEG))
    a("v_add_u32", V(R_X), K0OFF, V(vKV))
    On = lambda dt, qt: R_O + 4 * (dt * 2 + qt)
    O = lambda dt, qt: V(On(dt, qt), 4)
    Sn = lambda sb, kt2, qt: R_S[sb] + 4 * (kt2 * 2 + qt)
    Cn = lambda kt2, qt: R_C + 4 * (kt2 * 2 + qt)
    F = lambda i: V(R_F + 4 * i, 4)
    def apply_mask():
        a("v_mov_b32", V(R_X + 1), "s43")
        for r_ in range(4):
            a("v_cmp_le_i32", "vcc", r_, V(vQI))
            a("v_mov_b32", V(Cn(1, 0) + r_), V(R_X + 1))
            a("v_cndmask_b32", V(Cn(0, 0) + r_), V(R_X + 1), V(Cn(0, 0) + r_), "vcc")
            a("v_cndmask_b32", V(Cn(1, 1) + r_), V(R_X + 1), V(Cn(1, 1) + r_), "vcc")
    def rdK(q, i, p): return lambda: q.issue("ds_read_b128", F(i), V(vKV), mods=f"offset:{p*16384 + 8192 + i*1024}")
    def rdV(q, i, p): return lambda: q.issue("ds_read_b128", F(i), V(vKV), mods=f"offset:{p*16384 + i*1024}")
    R_LM = [228, 236]
    R_ONE = 244
    MSUM = True
    Lr = lambda sb, qt: R_LM[sb] + 4 * qt
    CHK = 47
    ET = [t + 0.5 for t in (10, 12, 14, 16, 18, 20, 22, 24, 26, 28, 30, 32, 34)] + [35.8, 36.5, 38.5]
    CT = [t + 0.5 for t in (17, 19, 23, 27, 31, 33, 37, 39)]
    def sm(sb):
        ops = []
        order = [(0, 0, 0), (0, 0, 1), (0, 1, 0), (0, 1, 1), (1, 0, 0), (1, 0, 1), (1, 1, 0), (1, 1, 1)]
        for ne, t in enumerate(ET):
            kt2, qt, pi = order[ne // 2]
            ops.append((t, lambda s0=Sn(sb, kt2, qt) + 2 * pi + ne % 2, ta=R_T + ne % 8: a("v_exp_f32", V(ta), V(s0))))
        for nc, t in enumerate(CT):
            kt2, qt, pi = order[nc]
            ops.append((t, lambda ta=R_T + (2 * nc) % 8, d=R_P[sb] + 4 * qt + 2 * kt2 + pi: a("v_cvt_pk_bf16_f32", V(d), V(ta), V(ta + 1))))
        for qt, t in ((0, 35.7), (1, 40.7)):
            ops.append((t, lambda qt=qt: a(MF16, V(Lr(sb, qt), 4), V(R_ONE, 4), V(R_P[sb] + 4 * qt, 4), V(Lr(sb ^ 1, qt), 4))))
        ops.append((43.5, lambda: a("v_cmp_nge_f32", S(50, 2), "s42", V(Lr(sb, 0)))))
        ops.append((45.5, lambda: a("v_cmp_nge_f32", "vcc", "s42", V(Lr(sb, 1)))))
        ops.append((46.1, lambda: a("s_or_b64", "vcc", "vcc", S(50, 2))))
        ops.sort(key=lambda x: x[0])
        return ops
    stubs = []
    def check(sb):
        ret = a.newlabel("ret"); stub = a.newlabel("stub")
        stubs.append((stub, ret, sb))
        a("s_cbranch_vccnz", stub)
        a.label(ret)
    def rowmax(sb):
        for qt in range(2):
            m = R_X + 2 + qt; s0 = Sn(sb, 0, qt); s1 = Sn(sb, 1, qt)
            a("v_max3_f32", V(m), V(s0), V(s0 + 1), V(s0 + 2))
            a("v_max3_f32", V(m), V(m), V(s0 + 3), V(s1))
            a("v_max3_f32", V(m), V(m), V(s1 + 1), V(s1 + 2))
            a("v_max_f32", V(m), V(m), V(s1 + 3))
        for op in ("v_permlane32_swap_b32", "v_permlane16_swap_b32"):
            for qt in range(2): a("v_mov_b32", V(R_X + 4 + qt), V(R_X + 2 + qt))
            for qt in range(2):
                a(op, V(R_X + 2 + qt), V(R_X + 4 + qt))
                a("v_max_f32", V(R_X + 2 + qt), V(R_X + 2 + qt), V(R_X + 4 + qt))
    def mf(q, tau, sbX, sbY):
        n = tau % 16; i, qt = n // 2, n % 2
        q.need(F(i))
        if tau < 16:
            kt2, T = i // 4, i % 4
            d = V(Sn(sbX, kt2, qt), 4)
            a(MF16, d, F(i), Q(qt, T), V(Cn(kt2, qt), 4) if T == 0 else d)
        else:
            a(MF16, O(i, qt), F(i), V(R_P[sbY] + 4 * qt, 4), O(i, qt))
    nomask = a.newlabel("nomask0")
    a("s_cmp_lg_u32", "s40", 0)
    a("s_cbranch_scc1", nomask)
    apply_mask()
    a.label(nomask)
    st_.stamp()
    q = LdsQ(a)
    for i in range(8): q.issue("ds_read_b128", F(i), V(R_X), mods=f"offset:{i*1024}")
    q.drain()
    a("s_barrier")
    ne2 = a.newlabel("noepw")
    a("s_cmp_lg_u32", "s3", 4)
    a("s_cbranch_scc1", ne2)
    a("v_mov_b32", V(8), k4.EPL)
    a("ds_write_b32", V(8), V(222))
    a("v_mov_b32", V(10), 0)
    a("ds_write_b32", V(8), V(10), mods="offset:4")
    a("ds_write_b32", V(8), V(10), mods="offset:8")
    a("s_waitcnt", "lgkmcnt(0)")
    a.label(ne2)
    skp2 = a.newlabel("skip_r1")
    a("s_cmp_eq_u32", "s14", 0)
    a("s_cbranch_scc1", skp2)
    for f in adma(): f()
    a.label(skp2)
    for tau in range(16):
        mf(q, tau, 0, None)
        if tau % 2 == 1: rdK(q, tau // 2, 0)()
    rowmax(0)
    for qt in range(2):
        for kt2 in range(2):
            for r_ in range(4):
                a("v_sub_f32", V(Sn(0, kt2, qt) + r_), V(Sn(0, kt2, qt) + r_), V(R_X + 2 + qt))
                a("v_sub_f32", V(Cn(kt2, qt) + r_), 0, V(R_X + 2 + qt))
    for t, f in sm(0):
        if t < 32: f()
    q.need(F(0), F(1), F(2), F(3))
    a("s_cmp_eq_u32", "s14", 0)
    a("s_cselect_b32", "s28", 0, 1)
    wl = a.newlabel("w8")
    a("s_cbranch_scc0", wl)
    a("s_waitcnt", "vmcnt(0)")
    a.label(wl)
    a("s_waitcnt", "vmcnt(8)")
    a("s_mov_b32", "s34", "s40")
    entry = list(q.q)
    tails = [a.newlabel(f"tail{p}") for p in range(4)]
    specials = []
    lblB = a.newlabel("loopB")
    a("s_cmp_eq_u32", "s14", 0)
    a("s_cbranch_scc0", lblB)
    PRI = opt(abl, "pri", 5)
    for grp, fast in ((0, 1), (0, 0), (1, 1), (1, 0)):
        if grp == 1 and fast: a.label(lblB)
        if fast:
            slowl = a.newlabel("attn_slow")
            a("s_cmp_lt_u32", "s34", 5)
            a("s_cbranch_scc1", slowl)
            loop = a.label(a.newlabel("attn_loop"))
        else:
            loop = a.label(slowl)
        q = LdsQ(a, entry)
        for p in range(4):
            sb = p & 1
            if not fast:
                sp = a.newlabel("special"); back = a.newlabel("back")
                specials.append((sp, back, p, grp))
                a("s_cmp_le_u32", "s34", 1)
                a("s_cbranch_scc1", sp)
                a.label(back)
            assert q.q == entry
            ev = []
            W = lambda *fr: (lambda: q.need(*[F(k) for k in fr]))
            pn = (p + 1) % 4
            ev += [(2 * i + 1.2, rdV(q, i, p)) for i in range(8)]
            ev += [(6.1, W(4, 5, 6, 7)), (12.1, W(0, 1, 2, 3)), (30.1, W(0, 1, 2, 3))]
            if p % 2 == 0:
                ev += [(17 + 2 * i + 0.2, rdK(q, i, pn)) for i in range(8)]
                ev += [(22.1, W(4, 5, 6, 7))]
            else:
                def hook():
                    q.drain()
                    if grp == 1:
                        a("s_waitcnt", "vmcnt(16)")
                        a("s_barrier", ann={"abar": 1})
                        a("s_add_u32", "s39", "s39", 1)
                    elif p == 1 and not fast:
                        nb = a.newlabel("nobar")
                        a("s_cmp_lt_u32", "s34", 2)
                        a("s_cbranch_scc1", nb)
                        a("s_barrier")
                        a.label(nb)
                    else:
                        a("s_barrier")
                    if p == 3: a("v_xor_b32", V(vKV), 65536, V(vKV))
                ev += [(22.1, hook)]
                ev += [(t, rdK(q, i, pn)) for i, t in enumerate((22.2, 23.2, 23.3, 25.2, 25.3, 27.2, 29.2, 31.2))]
                if grp == 1:
                    for i, f in enumerate(adma()): ev.append((24.05 + i, f))
            for t, f in sm(sb):
                if t >= 32: ev.append((t - 32, f))
            for t, f in sm(sb ^ 1):
                if t < 32: ev.append((t, f))
            ev.append((CHK - 32 + 0.5, lambda: check(sb)))
            if not fast: ev.append((8.1, lambda: a("s_sub_u32", "s34", "s34", 1)))
            elif p == 0: ev.append((8.1, lambda: a("s_sub_u32", "s34", "s34", 4)))
            if grp == 1 and PRI:
                if p == 0: ev.append((0.1, lambda: a("s_setprio", 1)))
                if PRI // 2 == p: ev.append((0.1 if PRI % 2 == 0 else 16.1, lambda: a("s_setprio", 0)))
            ev.sort(key=lambda x: x[0])
            k = 0
            for tau in range(32):
                mf(q, tau, sb ^ 1, sb)
                while k < len(ev) and ev[k][0] < tau + 1:
                    ev[k][1](); k += 1
            assert k == len(ev)
        assert q.q == entry, (q.q, entry)
        if fast:
            a("s_cmp_ge_u32", "s34", 5)
            a("s_cbranch_scc1", loop)
        else:
            a("s_branch", loop)
    for sp, back, p, grp in specials:
        a.label(sp)
        a("s_cmp_eq_u32", "s34", 0)
        a("s_cbranch_scc1", tails[p])
        apply_mask()
        a("s_branch", back)
    epi = a.newlabel("epi")
    for p in range(4):
        a.label(tails[p])
        sb = p & 1
        q = LdsQ(a, entry)
        for i in range(8): rdV(q, i, p)()
        for t, f in sm(sb):
            if t >= 32: f()
        check(sb)
        for tau in range(16, 32): mf(q, tau, None, sb)
        for qt in range(2): a("v_mov_b32", V(R_L[0] + qt), V(Lr(sb, qt)))
        a("s_branch", epi)
    rare_lbl = [a.newlabel("rare0"), a.newlabel("rare1")]
    for k, (stub, ret, sb) in enumerate(stubs):
        a.label(stub)
        a("s_mov_b32", "s48", k)
        a("s_branch", rare_lbl[sb])
    for sb in range(2):
        a.label(rare_lbl[sb])
        a("s_nop", 7)
        rowmax(sb)
        for qt in range(2):
            m = R_X + 2 + qt; f_ = R_X + 4 + qt
            a("v_max_f32", V(f_), 1.0, V(Lr(sb ^ 1, qt)))
            a("v_log_f32", V(f_), V(f_))
            a("v_max_f32", V(m), V(f_), V(m))
            a("v_sub_f32", V(f_), 0, V(m))
            a("v_exp_f32", V(f_), V(f_))
        for qt in range(2):
            m = R_X + 2 + qt; f_ = R_X + 4 + qt
            for dt in range(8):
                for r_ in range(4): a("v_mul_f32", V(On(dt, qt) + r_), V(f_), V(On(dt, qt) + r_))
            for r_ in range(4): a("v_mul_f32", V(Lr(sb ^ 1, qt) + r_), V(f_), V(Lr(sb ^ 1, qt) + r_))
            for kt2 in range(2):
                for r_ in range(4):
                    for reg in (Sn(sb, kt2, qt), Sn(sb ^ 1, kt2, qt), Cn(kt2, qt)):
                        a("v_sub_f32", V(reg + r_), V(reg + r_), V(m))
        for t, f in sm(sb):
            if t < 43: f()
        for t, f in sm(sb ^ 1):
            if t < CHK - 32 + 0.5: f()
        a("s_nop", 7)
        mine = [(k, ret) for k, (stub, ret, s2) in enumerate(stubs) if s2 == sb]
        for k, ret in mine[:-1]:
            a("s_cmp_eq_u32", "s48", k)
            a("s_cbranch_scc1", ret)
        a("s_branch", mine[-1][1])
    a.label(epi)
    a("s_setprio", 0)
    L = R_L[0]
    for op in (() if MSUM else ("v_permlane32_swap_b32", "v_permlane16_swap_b32")):
        for qt in range(2): a("v_mov_b32", V(R_X + 4 + qt), V(L + qt))
        for qt in range(2):
            a(op, V(L + qt), V(R_X + 4 + qt))
            a("v_add_f32", V(L + qt), V(L + qt), V(R_X + 4 + qt))
    for qt in range(2): a("v_rcp_f32", V(L + qt), V(L + qt))
    a("s_mov_b32", "s28", 0)
    a("s_mov_b32", "s29", 32 * 4096)
    n = 0
    for qt in range(2):
        for T in range(4):
            P = R_F + 4 * (n % 8); n += 1
            for hf in range(2):
                b = On(2 * T + hf, qt)
                for r_ in range(4): a("v_mul_f32", V(b + r_), V(L + qt), V(b + r_))
                a("v_cvt_pk_bf16_f32", V(P + 2 * hf), V(b), V(b + 1))
                a("v_cvt_pk_bf16_f32", V(P + 2 * hf + 1), V(b + 2), V(b + 3))
            a("buffer_store_dwordx4", V(P, 4), V(vST), S(SR_CTX, 4), "s28" if qt == 0 else "s29", mods=f"offen offset:{T*1024}" + " sc1")
    fin = a.newlabel("fin")
    a("s_cmp_eq_u32", "s14", 0)
    a("s_cbranch_scc1", fin)
    a("s_mov_b32", "s41", 0)
    for r_ in (200, 201, 202, 208, 209, 210): a("v_mov_b32", V(r_), 0)
    a("s_mov_b64", S(50, 2), S(SR_KV, 2))
    a("s_mul_i32", "s19", "s12", 5)
    a("s_add_u32", "s19", "s19", "s13")
    a("s_lshl_b32", "s19", "s19", 2)
    a("s_add_u32", "s19", "s19", "s15")
    a("s_lshl_b32", "s16", "s12", 3); a("s_sub_u32", "s28", "s13", 5); a("s_lshl_b32", "s28", "s28", 2)
    a("s_add_u32", "s16", "s16", "s28"); a("s_add_u32", "s16", "s16", "s15")
    a("s_mul_i32", "s22", "s15", 6144)
    a("s_add_u32", "s22", "s22", XCH)
    a("v_mov_b32", V(9), k4.EPL)
    a("ds_read_b32", V(13), V(9))
    a("s_load_dwordx2", S(8, 2), S(0, 2), KA["wo"])
    a("s_load_dwordx4", S(4, 4), S(0, 2), KA["bk"])
    a("s_load_dwordx2", S(10, 2), S(0, 2), KA["shk"])
    a("s_load_dwordx2", S(36, 2), S(0, 2), KA["gw"])
    a("v_mov_b32", V(14), 0)
    a("s_waitcnt", "lgkmcnt(0)")
    ld3 = a.newlabel("loader3"); ld2 = a.newlabel("loader2"); lde = a.newlabel("loader_early")
    ld = a.label(a.newlabel("loader"))
    a("s_cmp_lt_u32", "s41", 3)
    a("s_cbranch_scc1", lde)
    a("s_waitcnt", "vmcnt(16)")
    a.label(lde)
    a("s_waitcnt", "vmcnt(24)")
    a.label(ld2)
    a("s_add_u32", "s39", "s39", 1)
    a("s_cmp_lt_u32", "s39", "s38")
    a("s_cbranch_scc0", ld3)
    a("s_barrier", ann={"abar": 1})
    for f in adma(gate=True): f()
    a("s_add_u32", "s41", "s41", 1)
    UT = UtTask(a, "s19", vLANE, 88); GT = GateTask(a, "s16", vLANE, 88)
    def flag(off_fn):
        off_fn()
        a("s_mov_b64", "exec", 1)
        a("buffer_store_dword", V(13), V(14), S(SR_FL, 4), "s28", mods="offen sc1")
        a("s_mov_b64", "exec", -1)
    def fu():
        UT.ids()
        a("s_lshl_b32", "s28", S(UT.st + 1), 8); a("s_lshl_b32", "s29", S(UT.st), 2); a("s_add_u32", "s28", "s28", "s29"); a("s_add_u32", "s28", "s28", k4.FL_P)
    def fg():
        a("s_lshl_b32", "s28", "s16", 2); a("s_add_u32", "s28", "s28", k4.FL_G)
    mk = lambda d, pair, nm: srd(a, d, pair, SZ[nm])
    def wtouch():
        mk(96, 8, "wo")
        a("s_mul_i32", "s28", "s12", 6); a("s_add_u32", "s28", "s28", "s13"); a("s_lshl_b32", "s28", "s28", 2); a("s_add_u32", "s28", "s28", "s15")
        a("s_lshl_b32", "s28", "s28", 13)
        a("v_lshlrev_b32", V(200), 7, V(vLANE))
        a("buffer_load_dword", V(201), V(200), S(96, 4), "s28", mods="offen")
    planP = [(lambda: (wtouch(), UT.loads(mk, 96)), 16), (None, 0), (None, 0),
             (lambda: (a("s_waitcnt", "vmcnt(24)"), UT.compute(None, "s22", part=0)), 0),
             (lambda: UT.compute(None, "s22", part=1), 0),
             (lambda: UT.compute(None, "s22", part=2), 0),
             (lambda: (UT.compute(None, "s22", part=3), srd(a, 96, 50, 640 * 4096, off=WS_UT), UT.compute(96, "s22", part=4)), 4),
             (None, 0), (None, 0),
             (lambda: (a("s_waitcnt", "vmcnt(24)"), flag(fu)), 1)]
    planG = [(lambda: (wtouch(), mk(96, 36, "gw"), GT.loads(SR_X, 96)), 16),
             (None, 0),
             (lambda: (a("s_waitcnt", "vmcnt(16)"), srd(a, 96, 50, 2048 * 4, off=WS_G), GT.compute(96)), 2),
             (lambda: (a("s_waitcnt", "vmcnt(8)"), flag(fg)), 1)]
    lg_ = a.newlabel("plan_gate")
    a("s_cmp_eq_u32", "s13", 7)
    a("s_cbranch_scc1", ld)
    a("s_cmp_gt_u32", "s13", 4)
    a("s_cbranch_scc1", lg_)
    for plan in (planP, planG):
        if plan is planG: a.label(lg_)
        lbls = [a.newlabel(f"pstep{k}") for k in range(len(plan))]
        for k in range(len(plan)):
            a("s_cmp_eq_u32", "s41", k + 1)
            a("s_cbranch_scc1", lbls[k])
        a("s_branch", ld)
        for k, (fn, n) in enumerate(plan):
            a.label(lbls[k])
            if fn: fn()
            prev = plan[k - 1][1] if k else 0
            pprev = plan[k - 2][1] if k > 1 else 0
            extra = 8 if k < 2 else 0
            a("s_waitcnt", f"vmcnt({min(55, 16 + n + prev + pprev + extra)})")
            a("s_branch", ld2)
    a.label(ld3)
    a("s_waitcnt", "vmcnt(0)")
    a("s_barrier")
    a.label(fin)
    st_.stamp()
    k4.phase4(a, abl, st_, SR_FL, done)
    st_.stamp()
    st_.stamp(real=True)
    st_.flush("s3", wg=opt(abl, "wg", 0))
    a.label(done)
    a("s_endpgm")
    a.raw(k4.table_text())
    pol_rare = lambda i, c: (i.op == "s_cbranch_vccnz" and c % 3 == 1) or (i.op in ("s_cbranch_vccz", "s_cbranch_scc1") and c == 2)
    pol_norm = lambda i, c: (i.op == "s_cbranch_vccz") or (i.op == "s_cbranch_scc1")
    return dict(name=name, vgpr=NV, grid=256, block=512, lds=160 * 1024, waves=8, check_wgs=[0, 8, 24, 32, 40, 48, 56, 255], policies=[pol_norm, pol_rare], barinfo=True)
```

```python
from common import *
from side import *

RED = 0
CONVB = 81920
def gen_k3(a, name="oproj_kernel", abl=()):
    kernel_begin(a, name)
    done = a.newlabel("k3_done")
    a("s_cmp_ge_u32", "s2", 256); a("s_cbranch_scc1", done)
    st_ = Stamps(a, "stamp" in abl)
    st_.allreal = "rt" in abl
    st_.stamp(); st_.stamp(real=True)
    a("s_load_dwordx2", S(4, 2), S(0, 2), KA["x"])
    a("s_load_dwordx2", S(6, 2), S(0, 2), KA["ws"])
    a("s_load_dwordx2", S(8, 2), S(0, 2), KA["out"])
    a("s_load_dwordx4", S(48, 4), S(0, 2), KA["ssmk"])
    a("v_lshrrev_b32", "v1", 6, "v0")
    a("v_and_b32", "v2", 63, "v0")
    a("v_readfirstlane_b32", "s58", "v1", ann={"val": lambda c: c["wave"]})
    a("s_sub_u32", "s3", "s58", 3)
    a("s_and_b32", "s12", "s2", 7)
    a("s_lshr_b32", "s13", "s2", 3)
    a("s_lshr_b32", "s14", "s12", 1)
    a("s_lshl_b32", "s14", "s14", 3)
    a("s_lshr_b32", "s15", "s13", 2)
    a("s_add_u32", "s14", "s14", "s15")
    a("s_and_b32", "s15", "s12", 1)
    a("s_lshl_b32", "s15", "s15", 2)
    a("s_and_b32", "s13", "s13", 3)
    a("s_add_u32", "s15", "s15", "s13")
    VC = [4, 5, 6, 7]; VW = [8, 9, 10, 11, 12]
    a("v_lshlrev_b32", "v3", 4, "v2")
    a("s_lshl_b32", "s28", "s3", 15)
    a("s_lshl_b32", "s29", "s14", 19)
    a("s_add_u32", "s29", "s29", "s28")
    a("v_add_u32", V(VC[0]), "s29", "v3")
    for i in range(1, 4): a("v_add_u32", V(VC[i]), i * 131072, V(VC[0]))
    a("s_mul_i32", "s29", "s15", 5 * 131072)
    a("s_add_u32", "s29", "s29", "s28")
    a("v_add_u32", V(VW[0]), "s29", "v3")
    for i in range(1, 5): a("v_add_u32", V(VW[i]), i * 131072, V(VW[0]))
    a("s_waitcnt", "lgkmcnt(0)")
    srd(a, 16, 6, 2048 * 4096 * 2, off=WS_CTX)
    srd(a, 20, 6, 4096 * 640 * 2, off=WS_WOF)
    srd(a, 36, 6, 640 * 4096, off=WS_Y2T)
    srd(a, 44, 6, 640 * 4, off=WS_FLG)
    conv = a.newlabel("k3_conv")
    a("s_cmp_lt_u32", "s58", 3); a("s_cbranch_scc1", conv)
    a("s_setprio", 2)
    a("s_barrier")
    ACC = 16; FR = 96
    cf = lambda u, qt: V(FR + 36 * u + 4 * qt, 4)
    wf = lambda u, mt: V(FR + 36 * u + 16 + 4 * mt, 4)
    accn = lambda mt, qt: ACC + 4 * (mt * 4 + qt)
    def ldc(u, qt): a("buffer_load_dwordx4", cf(u, qt), V(VC[qt]), S(16, 4), "s30", mods=f"offen offset:{u*1024}")
    def ldw(u, mt): a("buffer_load_dwordx4", wf(u, mt), V(VW[mt]), S(20, 4), "s30", mods=f"offen offset:{u*1024}")
    a("s_mov_b32", "s30", 0)
    order = [("w", 0), ("w", 1), ("w", 2), ("w", 3), ("c", 0), ("c", 1), ("c", 2), ("c", 3), ("w", 4)]
    for u in range(4):
        for k, i in order: (ldw if k == "w" else ldc)(u, i)
    srd(a, 24, 4, SZ["x"])
    srd(a, 32, 8, SZ["out"])
    srd(a, 40, 6, 2048 * 4, off=WS_G)
    for i in range(80): a("v_mov_b32", V(ACC + i), 0)
    vt, vm, vx, vy, vf = 240, 241, 242, 243, 244
    XE = 246; GE = 245; FL = 13
    a("v_and_b32", V(vt), 15, "v2")
    a("s_lshl_b32", "s28", "s14", 6)
    a("s_lshl_b32", "s29", "s3", 4)
    a("s_add_u32", "s28", "s28", "s29")
    a("v_add_u32", V(vt), "s28", V(vt))
    a("v_lshrrev_b32", V(vm), 4, "v2")
    a("v_lshlrev_b32", V(vm), 2, V(vm))
    a("s_mul_i32", "s28", "s15", 80)
    a("v_add_u32", V(vm), "s28", V(vm))
    a("v_mul_u32_u24", V(vx), 1280, V(vt))
    a("v_lshl_add_u32", V(vx), V(vm), 1, V(vx))
    a("v_lshlrev_b32", V(vy), 12, V(vm))
    a("v_lshl_add_u32", V(vy), V(vt), 1, V(vy))
    a("v_lshlrev_b32", V(vt), 2, V(vt))
    a("v_min_u32", V(vf), 39, "v2")
    a("v_lshlrev_b32", V(vf), 3, V(vf))
    a("s_mul_i32", "s28", "s15", 320)
    a("v_add_u32", V(vf), "s28", V(vf))
    a("s_mov_b32", "s31", 0)
    st_.stamp()
    YE = FR
    def yloads():
        for mt in range(5):
            for r_ in range(4):
                a("s_mov_b32", "s28", (mt * 16 + r_) * 4096)
                a("buffer_load_ushort", V(YE + 4 * mt + r_), V(vy), S(36, 4), "s28", mods="offen sc1")
    slow = a.newlabel("k3_slowpoll"); back = a.newlabel("k3_pollok")
    for last in (0, 1):
        if not last:
            loop = a.label(a.newlabel("k3_loop"))
            a("s_add_u32", "s30", "s30", 4096)
        else:
            a("buffer_load_dwordx2", V(14, 2), V(vf), S(44, 4), 0, mods="offen sc1")
            a("buffer_load_dword", V(GE), V(vt), S(40, 4), 0, mods="offen")
            for mt in range(5):
                a("buffer_load_dwordx2", V(XE + 2 * mt, 2), V(vx), S(24, 4), 0, mods=f"offen offset:{mt*32}")
        for u in range(4):
            if not last: a("s_waitcnt", "vmcnt(27)")
            elif u < 3: a("s_waitcnt", f"vmcnt({27 - 9*u + 7})")
            else:
                a("s_waitcnt", "vmcnt(6)")
                a("v_and_b32", "v14", "v14", "v15")
                a("v_cmp_ne_u32", "vcc", 1, "v14")
                a("s_cbranch_vccnz", slow)
                a.label(back)
                yloads()
            for mt in range(5):
                for qt in range(4):
                    a(MF16, V(accn(mt, qt), 4), wf(u, mt), cf(u, qt), V(accn(mt, qt), 4))
                    if not last:
                        if qt == 3 and mt < 4: ldw(u, mt)
                        if mt == 4: ldc(u, qt)
                        if mt == 4 and qt == 3: ldw(u, 4)
        if not last:
            a("s_add_u32", "s31", "s31", 1)
            a("s_cmp_lt_u32", "s31", 7)
            a("s_cbranch_scc1", loop)
    st_.stamp()
    a("s_mul_i32", "s28", "s3", 20480)
    a("v_add_u32", "v8", "s28", "v3")
    for qt in range(4):
        for mt in range(5):
            a("ds_write_b128", "v8", V(accn(mt, qt), 4), mods=f"offset:{(qt*5+mt)*1024}")
    a("s_waitcnt", "lgkmcnt(0)")
    a("s_barrier")
    a("s_mul_i32", "s28", "s3", 5120)
    a("v_add_u32", "v8", "s28", "v3")
    a("v_add_u32", "v9", 40960, "v8")
    R = ACC
    for mt in range(5):
        for sw in range(4):
            a("ds_read_b128", V(R + 4 * (sw * 5 + mt), 4), "v8" if sw < 2 else "v9", mods=f"offset:{(sw%2)*20480 + mt*1024}")
    a("s_waitcnt", "vmcnt(0)")
    T = FR + 40; G1 = FR + 38
    a("v_sub_f32", V(G1), 1.0, V(GE))
    rnd2(a, T, G1, T + 1)
    B = FR + 64
    for mt in range(5):
        t = B + 4 * mt
        unpack(a, XE + 2 * mt, t, t + 1); unpack(a, XE + 2 * mt + 1, t + 2, t + 3)
        for r_ in range(4):
            y = YE + 4 * mt + r_
            a("v_lshlrev_b32", V(y), 16, V(y))
            a("v_mul_f32", V(t + r_), V(t + r_), V(y))
        rnd2(a, T, t, t + 1); rnd2(a, T + 1, t + 2, t + 3)
        for r_ in range(4): a("v_mul_f32", V(t + r_), V(t + r_), V(G1))
        rnd2(a, T, t, t + 1); rnd2(a, T + 1, t + 2, t + 3)
    a("s_waitcnt", "lgkmcnt(0)")
    for mt in range(5):
        s = R + 4 * mt; t = B + 4 * mt; o = T + 2 + 2 * mt
        for r_ in range(4):
            a("v_add_f32", V(s + r_), V(s + r_), V(s + 20 + r_))
            a("v_add_f32", V(s + 40 + r_), V(s + 40 + r_), V(s + 60 + r_))
            a("v_add_f32", V(s + r_), V(s + r_), V(s + 40 + r_))
        rnd2(a, T, s, s + 1); rnd2(a, T + 1, s + 2, s + 3)
        for r_ in range(4): a("v_mul_f32", V(s + r_), V(s + r_), V(GE))
        rnd2(a, T, s, s + 1); rnd2(a, T + 1, s + 2, s + 3)
        for r_ in range(4): a("v_add_f32", V(s + r_), V(s + r_), V(t + r_))
        a("v_cvt_pk_bf16_f32", V(o), V(s), V(s + 1))
        a("v_cvt_pk_bf16_f32", V(o + 1), V(s + 2), V(s + 3))
        a("buffer_store_dwordx2", V(o, 2), V(vx), S(32, 4), 0, mods=f"offen offset:{mt*32}")
    fin = a.newlabel("k3_fin")
    a("s_branch", fin)
    a.label(slow)
    a("s_mov_b32", "s31", 0)
    pl = a.label(a.newlabel("k3_pl"))
    a("s_sleep", 8)
    a("buffer_load_dwordx2", V(14, 2), V(vf), S(44, 4), 0, mods="offen sc1")
    a("s_waitcnt", "vmcnt(0)")
    a("v_and_b32", "v14", "v14", "v15")
    a("v_cmp_ne_u32", "vcc", 1, "v14")
    a("s_cbranch_vccz", back)
    a("s_add_u32", "s31", "s31", 1)
    a("s_cmp_lt_u32", "s31", 1 << 19)
    a("s_cbranch_scc1", pl)
    a("s_branch", back)
    a.label(conv)
    a("s_mov_b32", "s28", "s58")
    a("s_lshl_b32", "s56", "s28", 8)
    a("s_add_u32", "s56", "s56", "s2")
    a("s_cmp_ge_u32", "s56", 640); a("s_cbranch_scc1", done)
    srd(a, 16, 48, SZ["ssmk"]); srd(a, 20, 50, SZ["ssmd"]); srd(a, 24, 6, 640 * 4096, off=WS_UT)
    a("s_mul_i32", "s57", "s28", CONV_LDS)
    a("s_add_u32", "s57", "s57", CONVB)
    st_.n = 2
    conv_wave(a, "s56", "s57", 2, 16, 24, 20, 36, 4, 60, sfx=" sc1", after_loads=lambda: a("s_barrier"), mid=st_.stamp)
    a("s_waitcnt", "vmcnt(0)")
    a("s_lshl_b32", "s28", "s56", 2)
    a("v_mov_b32", "v4", "s28")
    a("v_mov_b32", "v5", 1)
    a("s_mov_b64", "exec", 1)
    a("buffer_store_dword", "v5", "v4", S(44, 4), 0, mods="offen sc1")
    a("s_mov_b64", "exec", -1)
    a.label(fin)
    st_.stamp()
    if st_.en: a("s_waitcnt", "vmcnt(0)")
    st_.stamp(); st_.stamp(real=True)
    st_.flush("s58", wg=0, slot=1)
    a.label(done)
    a("s_endpgm")
    pol = lambda i, c: (i.op == "s_cbranch_vccnz") or (i.op == "s_cbranch_vccz" and c == 2)
    return dict(name=name, vgpr=256, grid=256, block=448, lds=CONVB + 3 * CONV_LDS, waves=7, policies=[None, pol], nobarcheck=True)
```

```python
from common import *
from side import *

EPL = 160 * 1024 - 64
FL_P = 4096
FL_Y2 = 10240
FL_C = 16384
FL_G = 28672

def tile_table():
    tab = [None] * 256
    for half in range(2):
        tiles = []
        for c in range(5):
            cbk = half * 5 + c
            if c < 3: st = [(min(5 * k, 123), 5) for k in range(26)]
            else: st = [(6 * k, 6) for k in range(3)] + [(18 + 5 * k, 5) for k in range(22)]
            tiles += [(q, n, cbk) for q, n in st]
        tiles.sort(key=lambda t: (t[0], t[2]))
        assert len(tiles) == 128
        for qd in range(4):
            mine = tiles[16 * qd:16 * qd + 16] + tiles[64 + 16 * qd:64 + 16 * qd + 16]
            xcd = 2 * qd + half
            for idx, t in enumerate(mine): tab[idx * 8 + xcd] = t
    cover = set()
    for q, n, c in tab:
        for k in range(n): cover.add((q + k, c))
    assert len(cover) == 1280
    return tab
TAB = tile_table()
def pack(t): return t[0] | (t[1] << 8) | (t[2] << 16)

def phase4(a, abl, st_, SR_FL, done):
    tabl = "p4_table"
    a("s_load_dwordx2", S(4, 2), S(0, 2), KA["x"])
    a("s_load_dwordx2", S(6, 2), S(0, 2), KA["ws"])
    a("s_load_dwordx2", S(8, 2), S(0, 2), KA["out"])
    a("s_load_dwordx2", S(10, 2), S(0, 2), KA["wo"])
    a("s_load_dwordx4", S(48, 4), S(0, 2), KA["ssmk"])
    a("s_getpc_b64", S(28, 2))
    pc = a.label(a.newlabel("p4_pc"))
    a("s_add_u32", "s28", "s28", f"{tabl}-{pc}")
    a("s_addc_u32", "s29", "s29", 0)
    a("s_lshl_b32", "s30", "s2", 2)
    a("s_load_dword", "s13", S(28, 2), "s30", ann={"val": lambda c: pack(TAB[c["wg"]])})
    a("v_mov_b32", "v14", EPL)
    a("ds_read_b32", "v13", "v14")
    a("v_lshlrev_b32", "v3", 4, "v2")
    a("s_lshl_b32", "s41", "s40", 7)
    a("s_lshl_b32", "s31", "s12", 2)
    a("s_add_u32", "s41", "s41", "s31")
    a("s_add_u32", "s41", "s41", FL_C)
    a("s_and_b32", "s58", "s38", 2)
    a("s_lshl_b32", "s58", "s58", 15)
    a("s_xor_b32", "s57", "s58", 65536)
    a("v_mov_b32", "v12", 0)
    def sig(val, soff):
        a("s_mov_b64", "exec", 1)
        a("buffer_store_dword", val, "v12", S(SR_FL, 4), soff, mods="offen sc1")
        a("s_mov_b64", "exec", -1)
    def ldsinc(off):
        a("v_mov_b32", "v1", 1)
        a("s_mov_b64", "exec", 1)
        a("ds_add_u32", "v14", "v1", mods=f"offset:{off}")
        a("s_mov_b64", "exec", -1)
    def ldswait(off):
        a("s_mov_b32", "s31", 0)
        gw = a.label(a.newlabel("p4_gw")); gok = a.newlabel("p4_gok")
        a("ds_read_b32", "v11", "v14", mods=f"offset:{off}")
        a("s_waitcnt", "lgkmcnt(0)")
        a("v_readfirstlane_b32", "s28", "v11", ann={"val": lambda c: 4})
        a("s_cmp_ge_u32", "s28", 4)
        a("s_cbranch_scc1", gok)
        a("s_sleep", 2)
        a("s_add_u32", "s31", "s31", 1)
        a("s_cmp_lt_u32", "s31", 1 << 19)
        a("s_cbranch_scc1", gw)
        a.label(gok)
    a("s_waitcnt", "lgkmcnt(0)")
    conv = a.newlabel("p4_conv")
    srd(a, 36, 6, 640 * 4096, off=WS_Y2T)
    a("s_cmp_ge_u32", "s3", 4); a("s_cbranch_scc1", conv)
    ldsinc(8)
    a("s_setprio", 2)
    a("s_and_b32", "s14", "s13", 255)
    a("s_lshr_b32", "s15", "s13", 16)
    a("s_bfe_u32", "s28", "s13", "0x80008")
    a("s_add_u32", "s28", "s28", "s14")
    a("s_sub_u32", "s28", "s28", 1)
    a("s_lshr_b32", "s28", "s28", 1)
    a("s_lshr_b32", "s29", "s14", 1)
    a("v_lshrrev_b32", "v15", 3, "v2")
    a("v_add_u32", "v15", "s29", "v15")
    a("v_min_u32", "v15", "s28", "v15")
    a("v_lshlrev_b32", "v15", 7, "v15")
    a("v_and_b32", "v1", 7, "v2")
    a("v_lshl_add_u32", "v15", "v1", 2, "v15")
    a("s_lshl_b32", "s42", "s3", 5)
    a("s_add_u32", "s42", "s42", FL_C)
    def fpoll(): a("buffer_load_dword", "v10", "v15", S(SR_FL, 4), "s42", mods="offen sc1")
    fpoll()
    srd(a, 16, 6, 2048 * 4096 * 2, off=WS_CTX)
    srd(a, 20, 10, SZ["wo"])
    srd(a, 24, 4, SZ["x"])
    srd(a, 60, 8, SZ["out"])
    srd(a, 44, 6, 2048 * 4, off=WS_G)
    VC = 4; VWs = 5; WA = [6, 7, 8, 9]
    a("s_lshl_b32", "s28", "s3", 15)
    a("s_lshl_b32", "s29", "s14", 17)
    a("s_add_u32", "s29", "s29", "s28")
    a("v_add_u32", V(VC), "s29", "v3")
    a("v_lshrrev_b32", V(VWs), 3, "v2")
    a("s_lshl_b32", "s28", "s3", 10)
    a("v_add_u32", V(VWs), "s28", V(VWs))
    a("v_mul_u32_u24", V(VWs), 1280, V(VWs))
    a("v_lshrrev_b32", "v1", 4, "v2"); a("v_lshlrev_b32", "v1", 1, "v1")
    a("v_and_b32", "v11", 7, "v2"); a("v_xor_b32", "v1", "v1", "v11")
    a("v_lshl_add_u32", V(VWs), "v1", 4, V(VWs))
    a("s_lshl_b32", "s28", "s15", 7)
    a("v_add_u32", V(VWs), "s28", V(VWs))
    a("s_lshl_b32", "s59", "s3", 14)
    a("s_add_u32", "s59", "s59", "s58")
    a("v_lshrrev_b32", "v1", 2, "v2")
    a("v_lshlrev_b32", "v11", 7, "v1")
    a("v_and_b32", V(WA[0]), 3, "v2")
    a("v_lshl_add_u32", "v11", V(WA[0]), 3, "v11")
    a("v_add_u32", "v11", "s59", "v11")
    a("v_bfe_u32", "v1", "v2", 3, 2)
    for mt in range(4):
        a("v_xor_b32", V(WA[mt]), mt, "v1")
        a("v_lshl_add_u32", V(WA[mt]), V(WA[mt]), 5, "v11")
    vt, vm, vx, vy, vf = 240, 241, 242, 243, 244
    a("v_and_b32", V(vt), 15, "v2")
    a("s_lshl_b32", "s28", "s14", 4)
    a("v_add_u32", V(vt), "s28", V(vt))
    a("v_lshrrev_b32", V(vm), 4, "v2")
    a("v_lshlrev_b32", V(vm), 2, V(vm))
    a("s_lshl_b32", "s28", "s15", 6)
    a("s_lshl_b32", "s29", "s3", 4)
    a("s_add_u32", "s28", "s28", "s29")
    a("v_add_u32", V(vm), "s28", V(vm))
    a("v_mul_u32_u24", V(vx), 1280, V(vt))
    a("v_lshl_add_u32", V(vx), V(vm), 1, V(vx))
    a("v_lshlrev_b32", V(vy), 12, V(vm))
    a("v_lshl_add_u32", V(vy), V(vt), 1, V(vy))
    a("v_lshlrev_b32", V(vt), 2, V(vt))
    a("s_lshl_b32", "s28", "s28", 2)
    a("s_add_u32", "s28", "s28", FL_Y2)
    a("v_lshlrev_b32", V(vf), 2, "v2")
    a("v_add_u32", V(vf), "s28", V(vf))
    a("s_bfe_u32", "s28", "s13", "0x80008")
    a("s_add_u32", "s28", "s28", "s14")
    a("s_lshl_b32", "s28", "s28", 1)
    a("s_sub_u32", "s28", "s28", 1)
    a("s_lshl_b32", "s29", "s14", 1)
    a("s_sub_u32", "s29", "s29", 16)
    a("v_add_u32", "v1", "s29", "v2")
    a("v_min_u32", "v1", "s28", "v1")
    a("v_lshlrev_b32", "v1", 2, "v1")
    a("v_add_u32", "v1", FL_G, "v1")
    a("v_cmp_gt_u32", "vcc", 16, "v2")
    a("v_cndmask_b32", V(vf), "v1", V(vf), "vcc")
    def wdma(step_imm, slot):
        L = []
        for i in range(4):
            def f(i=i):
                if i == 0: a("s_add_u32", "m0", "s59", slot * 4096)
                a("s_add_u32", "s35", "s33", step_imm * 32 * 1280 + i * 8 * 1280 - i * 1024)
                a("buffer_load_dwordx4", V(VWs), S(20, 4), "s35", mods=f"offen offset:{i*1024} lds")
            L.append(f)
        return L
    a("s_mov_b32", "s33", 0)
    a("s_mov_b32", "s30", 0)
    ldswait(8)
    for u in range(4):
        for f in wdma(u, u): f()
    a("s_waitcnt", "vmcnt(16)")
    sig("v13", "s41")
    ldsinc(4)
    st_.stamp()
    a("s_mov_b32", "s31", 0)
    cp = a.label(a.newlabel("p4_cpoll")); cok = a.newlabel("p4_cok")
    a("v_cmp_ne_u32", "vcc", "v10", "v13")
    a("s_cbranch_vccz", cok)
    a("s_sleep", 6)
    fpoll()
    a("s_waitcnt", "vmcnt(0)")
    a("s_add_u32", "s31", "s31", 1)
    a("s_cmp_lt_u32", "s31", 1 << 19)
    a("s_cbranch_scc1", cp)
    a.label(cok)
    ldswait(4)
    st_.stamp()
    fin = a.newlabel("p4_fin")
    l6 = a.newlabel("p4_nq6")
    a("s_bitcmp1_b32", "s13", 9)
    a("s_cbranch_scc1", l6)
    n_st = st_.n
    for nq in (5, 6):
        if nq == 6: a.label(l6)
        st_.n = n_st
        ACC = 16; CF = ACC + 16 * nq; WF = CF + 16 * nq
        assert WF + 32 <= 240
        cf = lambda u, qt: V(CF + 4 * (u * nq + qt), 4)
        wf = lambda s, mt: V(WF + 16 * s + 4 * mt, 4)
        accn = lambda mt, qt: ACC + 4 * (mt * nq + qt)
        for qt in range(nq): a("s_mov_b32", S(60 - 8 + 0) if False else S(96 + qt if qt < 4 else 50 + qt), qt * 131072)
        SO = [96, 97, 98, 99, 54, 55]
        def ldc(u, qt): a("buffer_load_dwordx4", cf(u, qt), V(VC), S(16, 4), S(SO[qt]), mods=f"offen offset:{u*1024} sc1")
        q = LdsQ(a)
        def rdw(u, mt):
            for t in range(2):
                q.issue("ds_read_b64_tr_b16", V(WF + 16 * (u % 2) + 4 * mt + 2 * t, 2), V(WA[mt]), mods=f"offset:{u*4096 + t*2048}")
        for u in range(4):
            for qt in range(nq): ldc(u, qt)
        a("s_waitcnt", f"vmcnt({4*nq})")
        for mt in range(4): rdw(0, mt)
        a("s_mov_b32", "s31", 0)
        NO = nq + 4
        XE = CF; YE = CF + 2 * nq; GE = CF + 6 * nq
        slow = a.newlabel("p4_slowpoll"); back = a.newlabel("p4_pollok")
        qent = list(q.q)
        for mode in ("first", "loop", "last"):
            if mode == "loop": loop = a.label(a.newlabel("p4_loop"))
            if mode != "last":
                a("v_add_u32", V(VC), 4096, V(VC))
                a("s_add_u32", "s33", "s33", 128 * 1280)
            else:
                a("buffer_load_dword", "v10", V(vf), S(SR_FL, 4), 0, mods="offen sc1")
            assert q.q == qent
            for u in range(4):
                if mode == "first": n = (3 - u) * nq + u * NO if u < 3 else nq + 2 * NO
                elif mode == "loop": n = nq + 2 * NO
                else: n = [nq + 2 * NO + 1, nq + NO + 1, nq + 1, 0][u]
                a("s_waitcnt", f"vmcnt({n})")
                if mode == "last" and u == 3:
                    a("v_cmp_ne_u32", "vcc", "v10", "v13")
                    a("s_cbranch_vccnz", slow)
                    a.label(back)
                    for qt in range(nq):
                        a("s_mov_b32", "s28", qt * 16 * 1280)
                        a("buffer_load_dwordx2", V(XE + 2 * qt, 2), V(vx), S(24, 4), "s28", mods="offen")
                        a("buffer_load_dword", V(GE + qt), V(vt), S(44, 4), 0, mods=f"offen offset:{qt*64} sc1")
                    for r_ in range(4):
                        a("s_mov_b32", "s28", r_ * 4096)
                        for qt in range(nq):
                            a("buffer_load_ushort", V(YE + 4 * qt + r_), V(vy), S(36, 4), "s28", mods=f"offen offset:{qt*32} sc1")
                q.drain()
                dm = wdma(u, u) if mode != "last" else []
                k = 0
                for mt in range(4):
                    for qt in range(nq):
                        d = V(accn(mt, qt), 4)
                        a(MF16, d, wf(u % 2, mt), cf(u, qt), "0" if (mode == "first" and u == 0) else d)
                        if qt == 0 and not (mode == "last" and u == 3): rdw((u + 1) % 4, mt)
                        if mt < 3 and qt in (2, 4) and dm: dm.pop(0)()
                        if mt == 3 and mode != "last": ldc(u, qt)
                assert not dm
            if mode == "loop":
                a("s_add_u32", "s31", "s31", 1)
                a("s_cmp_lt_u32", "s31", 6)
                a("s_cbranch_scc1", loop)
        st_.stamp()
        a("s_barrier")
        RW = 4 * nq * 1024
        a("s_mul_i32", "s28", "s3", RW)
        a("v_add_u32", "v8", "s28", "v3")
        for mt in range(4):
            for qt in range(nq):
                a("ds_write_b128", "v8", V(accn(mt, qt), 4), mods=f"offset:{(mt*nq+qt)*1024}")
        T = WF; G1 = WF + 16; B = CF + 8 * nq
        a("s_waitcnt", "vmcnt(0)")
        for qt in range(nq):
            t = B + 4 * qt
            a("v_sub_f32", V(G1), 1.0, V(GE + qt))
            rnd2(a, T, G1, T + 1)
            unpack(a, XE + 2 * qt, t, t + 1); unpack(a, XE + 2 * qt + 1, t + 2, t + 3)
            for r_ in range(4):
                y = YE + 4 * qt + r_
                a("v_lshlrev_b32", V(y), 16, V(y))
                a("v_mul_f32", V(t + r_), V(t + r_), V(y))
            rnd2(a, T, t, t + 1); rnd2(a, T + 1, t + 2, t + 3)
            for r_ in range(4): a("v_mul_f32", V(t + r_), V(t + r_), V(G1))
            rnd2(a, T, t, t + 1); rnd2(a, T + 1, t + 2, t + 3)
        a("s_waitcnt", "lgkmcnt(0)")
        a("s_barrier")
        a("s_mul_i32", "s28", "s3", nq * 1024)
        a("v_add_u32", "v8", "s28", "v3")
        a("v_add_u32", "v9", 2 * RW, "v8")
        R = ACC
        for qt in range(nq):
            for sw in range(4):
                a("ds_read_b128", V(R + 4 * (sw * nq + qt), 4), "v8" if sw < 2 else "v9", mods=f"offset:{(sw%2)*RW + qt*1024}")
        for qt in range(nq):
            a("s_waitcnt", f"lgkmcnt({min(15, 4*(nq-1-qt))})")
            s = R + 4 * qt; t = B + 4 * qt; o = T + 2 + 2 * qt; S_ = 4 * nq
            for r_ in range(4):
                a("v_add_f32", V(s + r_), V(s + r_), V(s + S_ + r_))
                a("v_add_f32", V(s + 2 * S_ + r_), V(s + 2 * S_ + r_), V(s + 3 * S_ + r_))
                a("v_add_f32", V(s + r_), V(s + r_), V(s + 2 * S_ + r_))
            rnd2(a, T, s, s + 1); rnd2(a, T + 1, s + 2, s + 3)
            for r_ in range(4): a("v_mul_f32", V(s + r_), V(s + r_), V(GE + qt))
            rnd2(a, T, s, s + 1); rnd2(a, T + 1, s + 2, s + 3)
            for r_ in range(4): a("v_add_f32", V(s + r_), V(s + r_), V(t + r_))
            a("v_cvt_pk_bf16_f32", V(o), V(s), V(s + 1))
            a("v_cvt_pk_bf16_f32", V(o + 1), V(s + 2), V(s + 3))
            a("s_mov_b32", "s28", qt * 16 * 1280)
            a("buffer_store_dwordx2", V(o, 2), V(vx), S(60, 4), "s28", mods="offen")
        a("s_branch", fin)
        a.label(slow)
        a("s_mov_b32", "s31", 0)
        pl = a.label(a.newlabel("p4_pl"))
        a("s_sleep", 8)
        a("buffer_load_dword", "v10", V(vf), S(SR_FL, 4), 0, mods="offen sc1")
        a("s_waitcnt", "vmcnt(0)")
        a("v_cmp_ne_u32", "vcc", "v10", "v13")
        a("s_cbranch_vccz", back)
        a("s_add_u32", "s31", "s31", 1)
        a("s_cmp_lt_u32", "s31", 1 << 19)
        a("s_cbranch_scc1", pl)
        a("s_branch", back)
    n0 = st_.n
    a.label(conv)
    sig("v13", "s41")
    a("v_mov_b32", "v250", "v13")
    a("s_sub_u32", "s28", "s3", 4)
    a("s_lshl_b32", "s56", "s28", 8)
    a("s_add_u32", "s56", "s56", "s2")
    a("s_cmp_ge_u32", "s56", 640); a("s_cbranch_scc1", done)
    a("s_mul_i32", "s28", "s28", CONV_LDS)
    a("s_add_u32", "s57", "s57", "s28")
    srd(a, 24, 6, 640 * 4096, off=WS_UT)
    srd(a, 16, 48, SZ["ssmk"]); srd(a, 20, 50, SZ["ssmd"])
    def wait_ut():
        a("s_lshr_b32", "s28", "s56", 6)
        a("s_lshl_b32", "s28", "s28", 8)
        a("s_add_u32", "s28", "s28", FL_P)
        a("v_lshlrev_b32", "v252", 2, "v2")
        a("s_mov_b32", "s31", 0)
        up = a.label(a.newlabel("p4_upoll")); uok = a.newlabel("p4_uok")
        a("buffer_load_dword", "v253", "v252", S(SR_FL, 4), "s28", mods="offen sc1")
        a("s_waitcnt", "vmcnt(0)")
        a("v_cmp_ne_u32", "vcc", "v253", "v250")
        a("s_cbranch_vccz", uok)
        a("s_sleep", 16)
        a("s_add_u32", "s31", "s31", 1)
        a("s_cmp_lt_u32", "s31", 1 << 18)
        a("s_cbranch_scc1", up)
        a.label(uok)
    st_.n = n0 - 3
    st_.stamp()
    conv_wave(a, "s56", "s57", 2, 16, 24, 20, 36, 4, 60, sfx=" sc1", mid=st_.stamp, before_ut=wait_ut)
    a("s_waitcnt", "vmcnt(0)")
    a("s_lshl_b32", "s28", "s56", 2)
    a("s_add_u32", "s28", "s28", FL_Y2)
    a("v_mov_b32", "v12", 0)
    sig("v250", "s28")
    a.label(fin)

def table_text():
    return ".p2align 2\np4_table:\n" + "".join(f".long {pack(t)}\n" for t in TAB)
```

```python
from common import *
import struct, math
def f32bits(x): return struct.unpack("<I", struct.pack("<f", x))[0]

def rnd2(a, pk, x0, x1):
    a("v_cvt_pk_bf16_f32", V(pk), V(x0), V(x1))
    a("v_lshlrev_b32", V(x0), 16, V(pk))
    a("v_and_b32", V(x1), "0xffff0000", V(pk))

def unpack(a, src, lo, hi):
    a("v_lshlrev_b32", V(lo), 16, V(src))
    a("v_and_b32", V(hi), "0xffff0000", V(src))

def prep_wof(a, s_task, vLane, SR_WO, SR_WOF, vb, st):
    a("s_lshr_b32", S(st), s_task, 3)
    a("s_and_b32", S(st + 1), s_task, 7)
    a("s_mul_i32", S(st + 2), S(st), 32 * 1280)
    a("s_mul_i32", S(st + 3), S(st + 1), 160)
    a("s_add_u32", S(st + 2), S(st + 2), S(st + 3))
    a("v_lshrrev_b32", V(vb), 4, V(vLane))
    a("v_mul_u32_u24", V(vb), 4 * 1280, V(vb))
    a("v_and_b32", V(vb + 1), 15, V(vLane))
    a("v_lshl_add_u32", V(vb), V(vb + 1), 1, V(vb))
    a("v_add_u32", V(vb + 1), 16 * 1280, V(vb))
    D = vb + 4
    for mt in range(5):
        for e in range(8):
            a("buffer_load_ushort", V(D + 20 * (e % 2) + 4 * mt + e // 2), V(vb + (e // 4)), S(SR_WO, 4), S(st + 2), mods=f"offen offset:{(e%4)*1280 + mt*32}")
    a("s_mul_i32", S(st + 1), S(st + 1), 5 * 131072)
    a("s_lshl_b32", S(st), S(st), 10)
    a("s_add_u32", S(st), S(st), S(st + 1))
    a("v_lshlrev_b32", V(vb + 2), 4, V(vLane))
    for mt in range(5):
        a("s_waitcnt", f"vmcnt({(4-mt)*8 + mt})")
        for k in range(4): a("v_lshl_or_b32", V(D + 4 * mt + k), V(D + 20 + 4 * mt + k), 16, V(D + 4 * mt + k))
        a("buffer_store_dwordx4", V(D + 4 * mt, 4), V(vb + 2), S(SR_WOF, 4), S(st), mods="offen")
        a("s_add_u32", S(st), S(st), 131072)

def prep_gate(a, s_wg, vLane, SR_X, SR_GW, SR_G, vb, st):
    a("v_lshrrev_b32", V(vb), 3, V(vLane))
    a("s_lshl_b32", S(st), s_wg, 3)
    a("v_add_u32", V(vb), S(st), V(vb))
    a("v_mul_u32_u24", V(vb + 1), 1280, V(vb))
    a("v_and_b32", V(vb + 2), 7, V(vLane))
    a("v_lshlrev_b32", V(vb + 2), 4, V(vb + 2))
    a("v_add_u32", V(vb + 1), V(vb + 1), V(vb + 2))
    XR = vb + 8; GR = XR + 40; T = vb + 3
    for i in range(10):
        a("buffer_load_dwordx4", V(XR + 4 * i, 4), V(vb + 1), S(SR_X, 4), 0, mods=f"offen offset:{i*128}")
        a("buffer_load_dwordx4", V(GR + 4 * i, 4), V(vb + 2), S(SR_GW, 4), 0, mods=f"offen offset:{i*128}")
    acc = vb + 2
    first = True
    for i in range(10):
        a("s_waitcnt", f"vmcnt({18 - 2*i})")
        for k in range(4):
            x = XR + 4 * i + k; g = GR + 4 * i + k
            unpack(a, x, T, T + 1); unpack(a, g, T + 2, T + 3)
            a("v_mul_f32", V(T), V(T), V(T + 2)); a("v_mul_f32", V(T + 1), V(T + 1), V(T + 3))
            rnd2(a, T + 2, T, T + 1)
            if first: a("v_add_f32", V(acc), V(T), V(T + 1)); first = False
            else:
                a("v_add_f32", V(acc), V(acc), V(T)); a("v_add_f32", V(acc), V(acc), V(T + 1))
    for off in (0x041F, 0x081F, 0x101F):
        a("ds_swizzle_b32", V(T), V(acc), mods=f"offset:{hex(off)}")
        a("s_waitcnt", "lgkmcnt(0)")
        a("v_add_f32", V(acc), V(acc), V(T))
    rnd2(a, T, acc, T + 1)
    a("v_mul_f32", V(acc), hex(f32bits(-math.log2(math.e))), V(acc))
    a("v_exp_f32", V(acc), V(acc))
    a("v_add_f32", V(acc), 1.0, V(acc))
    a("v_rcp_f32", V(acc), V(acc))
    rnd2(a, T, acc, T + 1)
    a("v_lshlrev_b32", V(vb), 2, V(vb))
    a("buffer_store_dword", V(acc), V(vb), S(SR_G, 4), 0, mods="offen")

def prep_ut(a, s_task, vLane, SR_K, SR_V, SR_SH, SR_UT, vb, st):
    a("s_mul_i32", S(st), s_task, 6554)
    a("s_lshr_b32", S(st), S(st), 16)
    a("s_mul_i32", S(st + 1), S(st), 10)
    a("s_sub_u32", S(st + 1), s_task, S(st + 1))
    a("v_lshrrev_b32", V(vb), 3, V(vLane))
    a("v_lshlrev_b32", V(vb), 2, V(vb))
    a("s_lshl_b32", S(st + 2), S(st), 5)
    a("v_add_u32", V(vb), S(st + 2), V(vb))
    a("v_and_b32", V(vb + 1), 7, V(vLane))
    a("v_lshlrev_b32", V(vb + 1), 3, V(vb + 1))
    a("s_lshl_b32", S(st + 2), S(st + 1), 6)
    a("v_add_u32", V(vb + 1), S(st + 2), V(vb + 1))
    a("v_mul_u32_u24", V(vb + 2), 1280, V(vb))
    a("v_lshl_add_u32", V(vb + 2), V(vb + 1), 1, V(vb + 2))
    a("v_subrev_u32", V(vb + 3), 3 * 1280, V(vb + 2))
    a("v_cmp_eq_u32", "vcc", 0, V(vb))
    a("v_mov_b32", V(vb + 4), "0x7f000000")
    a("v_cndmask_b32", V(vb + 3), V(vb + 3), V(vb + 4), "vcc")
    a("v_lshlrev_b32", V(vb + 4), 3, V(vb + 1))
    KR = vb + 8; VR = KR + 28; SH = VR + 16; KF = SH + 16; SF = KF + 14; W = SF + 8; OUT = W + 20
    for i in range(3): a("buffer_load_dwordx4", V(KR + 4 * i, 4), V(vb + 3), S(SR_K, 4), 0, mods=f"offen offset:{i*1280}")
    for i in range(4): a("buffer_load_dwordx4", V(KR + 12 + 4 * i, 4), V(vb + 2), S(SR_K, 4), 0, mods=f"offen offset:{i*1280}")
    for i in range(4): a("buffer_load_dwordx4", V(VR + 4 * i, 4), V(vb + 2), S(SR_V, 4), 0, mods=f"offen offset:{i*1280}")
    for i in range(4): a("buffer_load_dwordx4", V(SH + 4 * i, 4), V(vb + 4), S(SR_SH, 4), 0, mods=f"offen offset:{i*16}")
    a("v_lshlrev_b32", V(vb + 5), 12, V(vb + 1))
    a("v_lshlrev_b32", V(vb + 6), 1, V(vb))
    a("v_sub_u32", V(vb + 5), V(vb + 5), V(vb + 6))
    a("v_add_u32", V(vb + 5), 4088, V(vb + 5))
    a("s_waitcnt", "vmcnt(0)")
    a("s_mov_b32", S(st), 0)
    for cp in range(4):
        for i in range(7): unpack(a, KR + 4 * i + cp, KF + i, KF + 7 + i)
        for c in range(2):
            unpack(a, SH + 2 * (2 * cp + c), SF + 4 * c, SF + 4 * c + 1)
            unpack(a, SH + 2 * (2 * cp + c) + 1, SF + 4 * c + 2, SF + 4 * c + 3)
        for c in range(2):
            kf = KF + 7 * c; sf = SF + 4 * c
            A = W; P = W + 4; pk = W + 8
            for tap in range(4):
                dst = A if tap == 0 else P
                for t in range(4): a("v_mul_f32", V(dst + t), V(kf + t + tap), V(sf + 3 - tap))
                rnd2(a, pk, dst, dst + 1); rnd2(a, pk + 1, dst + 2, dst + 3)
                if tap:
                    for t in range(4): a("v_add_f32", V(A + t), V(A + t), V(P + t))
                    rnd2(a, pk, A, A + 1); rnd2(a, pk + 1, A + 2, A + 3)
            for t in range(4):
                if c == 0: a("v_lshlrev_b32", V(P + t), 16, V(VR + 4 * t + cp))
                else: a("v_and_b32", V(P + t), "0xffff0000", V(VR + 4 * t + cp))
                a("v_mul_f32", V(A + t), V(A + t), V(P + t))
            o = OUT + 2 * ((2 * cp + c) % 4)
            a("v_cvt_pk_bf16_f32", V(o), V(A + 3), V(A + 2))
            a("v_cvt_pk_bf16_f32", V(o + 1), V(A + 1), V(A))
            a("buffer_store_dwordx2", V(o, 2), V(vb + 5), S(SR_UT, 4), S(st), mods="offen")
            a("s_add_u32", S(st), S(st), 4096)
    return OUT + 8

def gen_prep(a, name="prep_kernel", abl=()):
    kernel_begin(a, name)
    done = a.newlabel("prep_done")
    a("s_cmp_ge_u32", "s2", 256); a("s_cbranch_scc1", done)
    a("s_load_dwordx2", S(4, 2), S(0, 2), KA["x"])
    a("s_load_dwordx2", S(6, 2), S(0, 2), KA["ws"])
    a("s_load_dwordx2", S(8, 2), S(0, 2), KA["wo"])
    a("s_load_dwordx4", S(12, 4), S(0, 2), KA["bk"])
    a("s_load_dwordx2", S(10, 2), S(0, 2), KA["shk"])
    a("s_load_dwordx2", S(16, 2), S(0, 2), KA["gw"])
    a("v_lshrrev_b32", "v1", 6, "v0")
    a("v_and_b32", "v2", 63, "v0")
    a("v_readfirstlane_b32", "s3", "v1", ann={"val": lambda c: c["wave"]})
    a("s_waitcnt", "lgkmcnt(0)")
    srd(a, 20, 4, SZ["x"]); srd(a, 24, 8, SZ["wo"]); srd(a, 28, 12, SZ["bk"]); srd(a, 32, 14, SZ["bv"])
    srd(a, 36, 10, SZ["shk"]); srd(a, 40, 16, SZ["gw"])
    srd(a, 44, 6, 4096 * 640 * 2, off=WS_WOF); srd(a, 48, 6, 640 * 4096, off=WS_UT); srd(a, 52, 6, 2048 * 4, off=WS_G)
    a("s_lshl_b32", "s56", "s2", 2)
    a("s_add_u32", "s56", "s56", "s3")
    prep_wof(a, "s56", 2, 24, 44, 4, 60)
    g = a.newlabel("prep_gate")
    a("s_cmp_eq_u32", "s3", 3); a("s_cbranch_scc1", g)
    a("s_lshl_b32", "s56", "s3", 8)
    a("s_add_u32", "s56", "s56", "s2")
    a("s_cmp_ge_u32", "s56", 640); a("s_cbranch_scc1", done)
    prep_ut(a, "s56", 2, 28, 32, 36, 48, 4, 60)
    a("s_endpgm")
    a.label(g)
    prep_gate(a, "s2", 2, 20, 40, 52, 4, 60)
    a.label(done)
    a("s_endpgm")
    return dict(name=name, vgpr=128, grid=256, block=256, lds=0, waves=4)

CONV_LDS = 13056
def conv_wave(a, s_ch, s_lds, vLane, SR_H, SR_UT, SR_D, SR_Y, vb, st, sfx="", after_loads=None, mid=None, before_ut=None):
    H0 = 64; H1 = 4288 - 64 + 4; UB = 8384; ZB = 12480
    assert ((H1 - H0) // 4) % 32 == 0 or True
    a("v_lshlrev_b32", V(vb), 4, V(vLane))
    a("s_lshl_b32", S(st), s_ch, 12)
    a("s_add_u32", "m0", s_lds, H0)
    for i in range(4): a("buffer_load_dwordx4", V(vb), S(SR_H, 4), S(st), mods=f"offen offset:{i*1024} lds")
    a("s_lshl_b32", S(st + 1), s_ch, 1)
    a("v_mov_b32", V(vb + 7), S(st + 1))
    a("buffer_load_ushort", V(vb + 6), V(vb + 7), S(SR_D, 4), 0, mods="offen")
    if before_ut: before_ut()
    a("s_add_u32", "m0", s_lds, UB)
    for i in range(4): a("buffer_load_dwordx4", V(vb), S(SR_UT, 4), S(st), mods=f"offen offset:{i*1024}{sfx} lds")
    if after_loads: after_loads()
    a("v_mov_b32", V(vb + 2), 0); a("v_mov_b32", V(vb + 3), 0)
    a("v_lshlrev_b32", V(vb + 1), 3, V(vLane))
    a("v_add_u32", V(vb + 1), s_lds, V(vb + 1))
    a("ds_write_b64", V(vb + 1), V(vb + 2, 2), mods=f"offset:{ZB}")
    a("v_and_b32", V(vb + 4), 15, V(vLane))
    a("v_lshlrev_b32", V(vb + 5), 2, V(vb + 4))
    a("v_add_u32", V(vb + 5), s_lds, V(vb + 5))
    a("ds_write_b32", V(vb + 5), V(vb + 2))
    a("ds_write_b32", V(vb + 5), V(vb + 2), mods=f"offset:{H1 - 4 - 64}")
    vB = vb + 2; vU = vb + 3; vO = vb + 5; vA = [vb + 8, vb + 9, vb + 10, vb + 11]
    a("v_lshrrev_b32", V(vb + 7), 4, V(vLane))
    a("v_add_u32", V(vb + 1), 1, V(vb + 4))
    a("v_and_b32", V(vA[1]), 1, V(vb + 1))
    a("v_sub_u32", V(vA[0]), V(vb + 4), V(vA[1]))
    a("v_lshlrev_b32", V(vA[0]), 1, V(vA[0]))
    a("v_lshl_add_u32", V(vA[0]), V(vb + 7), 4, V(vA[0]))
    a("v_mul_u32_u24", V(vA[1]), H1 - H0, V(vA[1]))
    a("s_add_u32", S(st + 1), s_lds, H0 - 30)
    a("v_add3_u32", V(vA[0]), V(vA[0]), V(vA[1]), S(st + 1))
    for k in range(1, 4): a("v_add_u32", V(vA[k]), 1024 * k, V(vA[0]))
    a("v_lshlrev_b32", V(vB), 4, V(vb + 7))
    a("v_lshlrev_b32", V(vO), 5, V(vb + 4))
    a("v_sub_u32", V(vB), V(vB), V(vO))
    a("s_add_u32", S(st + 1), s_lds, UB + 4064 - 3584)
    a("v_add_u32", V(vB), S(st + 1), V(vB))
    a("v_lshl_add_u32", V(vO), V(vb + 7), 3, V(vO))
    a("s_add_u32", S(st + 1), s_lds, UB + 4088 - 3584)
    a("v_sub_u32", V(vU), S(st + 1), V(vO))
    ACC = vb + 16; FA = [ACC + 32, ACC + 96]; FB = [ACC + 64, ACC + 128]
    a("s_waitcnt", "vmcnt(0)")
    a("v_add_u32", V(vb + 1), s_lds, V(vb))
    a("s_waitcnt", "lgkmcnt(0)")
    for i in range(4):
        a("ds_read_b128", V(FA[0] + 8 * i + 4, 4), V(vb + 1), mods=f"offset:{H0 + 1024*i}")
        a("ds_read_b32", V(FA[0] + 8 * i + 3), V(vb + 1), mods=f"offset:{H0 + 1024*i - 4}")
    for i in range(4):
        a("s_waitcnt", f"lgkmcnt({6 - 2*i + i})")
        for k in range(4): a("v_alignbit_b32", V(FB[0] + 4 * i + k), V(FA[0] + 8 * i + 4 + k), V(FA[0] + 8 * i + 3 + k), 16)
        a("ds_write_b128", V(vb + 1), V(FB[0] + 4 * i, 4), mods=f"offset:{H1 - 4 + 1024*i}")
    a("s_waitcnt", "lgkmcnt(0)")
    if mid: mid()
    q = LdsQ(a)
    def reads(s, rr):
        L = []
        for k in range(8):
            L.append(lambda k=k: q.issue("ds_read_b128", V(FB[s] + 4 * k, 4), V(vB), mods=f"offset:{64*rr + 512*(7-k)}"))
            def fa(k=k):
                o = 16 * rr + 128 * (k % 2)
                q.issue("ds_read2_b32", V(FA[s] + 4 * k, 2), V(vA[k // 2]), mods=f"offset0:{o} offset1:{o+1}")
                q.issue("ds_read2_b32", V(FA[s] + 4 * k + 2, 2), V(vA[k // 2]), mods=f"offset0:{o+2} offset1:{o+3}")
            L.append(fa)
        return L
    for f in reads(0, 0): f()
    written = set()
    for rr in range(8):
        s = rr & 1
        nxt = reads(s ^ 1, rr + 1) if rr < 7 else []
        pairs = sorted([(aa, c) for aa in range(8) for c in range(8 - aa)], key=lambda x: (max(x), x[0] + x[1]))
        for n, (aa, c) in enumerate(pairs):
            q.need(V(FA[s] + 4 * aa, 4), V(FB[s] + 4 * c, 4))
            d = V(ACC + 4 * (aa + c), 4)
            a(MF16, d, V(FA[s] + 4 * aa, 4), V(FB[s] + 4 * c, 4), d if (aa + c) in written else "0")
            written.add(aa + c)
            if n % 2 == 1 and nxt: nxt.pop(0)()
        assert not nxt
    U = FA[0]; T = FB[0]
    for cb in range(8): q.issue("ds_read_b64", V(U + 2 * cb, 2), V(vU), mods=f"offset:{512*(7-cb)}")
    a("v_lshlrev_b32", V(vb + 6), 16, V(vb + 6))
    a("v_add_u32", V(vO), s_lds, V(vO))
    q.drain()
    if mid: mid()
    for cb in range(8):
        y = ACC + 4 * cb; t = T + 8 * (cb % 2)
        rnd2(a, t + 4, y, y + 1); rnd2(a, t + 5, y + 2, y + 3)
        unpack(a, U + 2 * cb, t + 3, t + 2)
        unpack(a, U + 2 * cb + 1, t + 1, t)
        for r_ in range(4): a("v_mul_f32", V(t + r_), V(t + r_), V(vb + 6))
        rnd2(a, t + 4, t, t + 1); rnd2(a, t + 5, t + 2, t + 3)
        for r_ in range(4): a("v_add_f32", V(y + r_), V(y + r_), V(t + r_))
        a("v_cvt_pk_bf16_f32", V(t + 6), V(y), V(y + 1))
        a("v_cvt_pk_bf16_f32", V(t + 7), V(y + 2), V(y + 3))
        a("ds_write_b64", V(vO), V(t + 6, 2), mods=f"offset:{512*cb}")
    a("v_add_u32", V(vb + 1), s_lds, V(vb))
    a("s_waitcnt", "lgkmcnt(0)")
    for i in range(4): a("ds_read_b128", V(ACC + 4 * i, 4), V(vb + 1), mods=f"offset:{1024*i}")
    for i in range(4):
        a("s_waitcnt", f"lgkmcnt({3-i})")
        a("buffer_store_dwordx4", V(ACC + 4 * i, 4), V(vb), S(SR_Y, 4), S(st), mods=f"offen offset:{1024*i}" + sfx)
    return ACC + 160

def gen_conv(a, name="conv_kernel", abl=()):
    kernel_begin(a, name)
    done = a.newlabel("conv_done")
    a("s_cmp_ge_u32", "s2", 256); a("s_cbranch_scc1", done)
    a("s_load_dwordx4", S(4, 4), S(0, 2), KA["ssmk"])
    a("s_load_dwordx2", S(8, 2), S(0, 2), KA["ws"])
    a("v_lshrrev_b32", "v1", 6, "v0")
    a("v_and_b32", "v2", 63, "v0")
    a("v_readfirstlane_b32", "s3", "v1", ann={"val": lambda c: c["wave"]})
    a("s_waitcnt", "lgkmcnt(0)")
    srd(a, 20, 4, SZ["ssmk"]); srd(a, 24, 6, SZ["ssmd"])
    srd(a, 28, 8, 640 * 4096, off=WS_UT); srd(a, 32, 8, 640 * 4096, off=WS_Y2T)
    a("s_lshl_b32", "s56", "s3", 8)
    a("s_add_u32", "s56", "s56", "s2")
    a("s_cmp_ge_u32", "s56", 640); a("s_cbranch_scc1", done)
    a("s_mul_i32", "s57", "s3", CONV_LDS)
    nv = conv_wave(a, "s56", "s57", 2, 20, 28, 24, 32, 4, 60)
    a.label(done)
    a("s_endpgm")
    return dict(name=name, vgpr=nv, grid=256, block=192, lds=3 * CONV_LDS, waves=3)


class UtTask:
    def __init__(self, a, s_task, vLane, st):
        self.a = a; self.t = s_task; self.l = vLane; self.st = st
        self.vb = 208
        self.KR = 16; self.VR = self.KR + 28; self.SH = self.VR + 16; self.KF = 112; self.SF = self.KF + 14; self.W = self.SF + 8; self.OUT = 160
    def ids(self):
        a, st = self.a, self.st
        a("s_mul_i32", S(st), self.t, 6554); a("s_lshr_b32", S(st), S(st), 16)
        a("s_mul_i32", S(st + 1), S(st), 10); a("s_sub_u32", S(st + 1), self.t, S(st + 1))
    def loads(self, mk, SR):
        a, st, vb, L = self.a, self.st, self.vb, self.l
        self.ids()
        a("v_lshrrev_b32", V(vb), 3, V(L)); a("v_lshlrev_b32", V(vb), 2, V(vb))
        a("s_lshl_b32", S(st + 2), S(st), 5); a("v_add_u32", V(vb), S(st + 2), V(vb))
        a("v_and_b32", V(vb + 1), 7, V(L)); a("v_lshlrev_b32", V(vb + 1), 3, V(vb + 1))
        a("s_lshl_b32", S(st + 2), S(st + 1), 6); a("v_add_u32", V(vb + 1), S(st + 2), V(vb + 1))
        a("v_mul_u32_u24", V(vb + 2), 1280, V(vb))
        a("v_lshl_add_u32", V(vb + 2), V(vb + 1), 1, V(vb + 2))
        a("v_subrev_u32", V(vb + 3), 3 * 1280, V(vb + 2))
        a("v_cmp_eq_u32", "vcc", 0, V(vb))
        a("v_mov_b32", V(vb + 4), "0x7f000000")
        a("v_cndmask_b32", V(vb + 3), V(vb + 3), V(vb + 4), "vcc")
        a("v_lshlrev_b32", V(vb + 4), 3, V(vb + 1))
        KR, VR, SH = self.KR, self.VR, self.SH
        mk(SR, 4, "bk")
        for i in range(3): a("buffer_load_dwordx4", V(KR + 4 * i, 4), V(vb + 3), S(SR, 4), 0, mods=f"offen offset:{i*1280}")
        for i in range(4): a("buffer_load_dwordx4", V(KR + 12 + 4 * i, 4), V(vb + 2), S(SR, 4), 0, mods=f"offen offset:{i*1280}")
        mk(SR, 6, "bv")
        for i in range(4): a("buffer_load_dwordx4", V(VR + 4 * i, 4), V(vb + 2), S(SR, 4), 0, mods=f"offen offset:{i*1280}")
        mk(SR, 10, "shk")
        for i in range(4): a("buffer_load_dwordx4", V(SH + 4 * i, 4), V(vb + 4), S(SR, 4), 0, mods=f"offen offset:{i*16}")
    def compute(self, SR_UT, s_lds, part=None):
        a, st, vb, L = self.a, self.st, self.vb, self.l
        KR, VR, SH, KF, SF, W, OUT = self.KR, self.VR, self.SH, self.KF, self.SF, self.W, self.OUT
        if part in (None, 0):
            a("v_and_b32", V(vb), 7, V(L)); a("v_mul_u32_u24", V(vb), 528, V(vb))
            a("v_lshrrev_b32", V(vb + 1), 3, V(L)); a("v_lshlrev_b32", V(vb + 1), 3, V(vb + 1))
            a("v_sub_u32", V(vb), V(vb), V(vb + 1))
            a("s_add_u32", S(st + 2), s_lds, 56)
            a("v_add_u32", V(vb), S(st + 2), V(vb))
        for cp in range(4):
            if part is not None and part != cp: continue
            for i in range(7): unpack(a, KR + 4 * i + cp, KF + i, KF + 7 + i)
            for c in range(2):
                unpack(a, SH + 2 * (2 * cp + c), SF + 4 * c, SF + 4 * c + 1)
                unpack(a, SH + 2 * (2 * cp + c) + 1, SF + 4 * c + 2, SF + 4 * c + 3)
            for c in range(2):
                kf = KF + 7 * c; sf = SF + 4 * c
                A = W; P = W + 4
                for tap in range(4):
                    for t in range(4):
                        if tap == 0: a("v_mul_f32", V(A + t), V(kf + t), V(sf + 3))
                        else: a("v_fmac_f32", V(A + t), V(kf + t + tap), V(sf + 3 - tap))
                for t in range(4):
                    if c == 0: a("v_lshlrev_b32", V(P + t), 16, V(VR + 4 * t + cp))
                    else: a("v_and_b32", V(P + t), "0xffff0000", V(VR + 4 * t + cp))
                    a("v_mul_f32", V(A + t), V(A + t), V(P + t))
                o = OUT + 2 * ((2 * cp + c) % 4)
                a("v_cvt_pk_bf16_f32", V(o), V(A + 3), V(A + 2))
                a("v_cvt_pk_bf16_f32", V(o + 1), V(A + 1), V(A))
                a("ds_write_b64", V(vb), V(o, 2), mods=f"offset:{(2*cp+c)*64}")
        if part not in (None, 4): return
        self.ids()
        a("v_lshlrev_b32", V(vb + 1), 4, V(L))
        a("v_lshrrev_b32", V(vb + 2), 5, V(L))
        a("v_lshl_add_u32", V(vb + 1), V(vb + 2), 4, V(vb + 1))
        a("v_add_u32", V(vb + 1), s_lds, V(vb + 1))
        a("v_lshrrev_b32", V(vb + 2), 2, V(L)); a("v_lshlrev_b32", V(vb + 2), 12, V(vb + 2))
        a("v_and_b32", V(vb + 3), 3, V(L)); a("v_lshl_add_u32", V(vb + 2), V(vb + 3), 4, V(vb + 2))
        a("s_lshl_b32", S(st + 2), S(st + 1), 18)
        a("s_lshl_b32", S(st + 3), S(st), 6)
        a("s_sub_u32", S(st + 2), S(st + 2), S(st + 3))
        a("s_add_u32", S(st + 2), S(st + 2), 4096 - 64)
        a("s_waitcnt", "lgkmcnt(0)")
        for i in range(4): a("ds_read_b128", V(KR + 4 * i, 4), V(vb + 1), mods=f"offset:{i*1056}")
        for i in range(4):
            a("s_waitcnt", f"lgkmcnt({3-i})")
            a("buffer_store_dwordx4", V(KR + 4 * i, 4), V(vb + 2), S(SR_UT, 4), S(st + 2), mods="offen sc1")
            a("s_add_u32", S(st + 2), S(st + 2), 65536)

class WofTask:
    def __init__(self, a, s_hT, s_cb, vLane, st, D=16, O=48, vb=208):
        self.a = a; self.hT = s_hT; self.cb = s_cb; self.l = vLane; self.st = st; self.vb = vb; self.D = D; self.O = O
    def loads(self, SR):
        a, st, vb, L, D = self.a, self.st, self.vb, self.l, self.D
        a("s_mul_i32", S(st + 2), self.hT, 32 * 1280)
        a("s_mul_i32", S(st + 3), self.cb, 160)
        a("s_add_u32", S(st + 2), S(st + 2), S(st + 3))
        a("v_lshrrev_b32", V(vb), 4, V(L)); a("v_mul_u32_u24", V(vb), 4 * 1280, V(vb))
        a("v_and_b32", V(vb + 1), 15, V(L)); a("v_min_u32", V(vb + 1), 9, V(vb + 1))
        a("v_lshl_add_u32", V(vb), V(vb + 1), 4, V(vb))
        a("v_add_u32", V(vb + 1), 16 * 1280, V(vb))
        for e in range(8):
            a("buffer_load_dwordx4", V(D + 4 * e, 4), V(vb + (e // 4)), S(SR, 4), S(st + 2), mods=f"offen offset:{(e%4)*1280}")
    def compute(self, SR_WOF, s_lds, part=None):
        a, st, vb, L, D = self.a, self.st, self.vb, self.l, self.D
        if part == 1: return self.stores(SR_WOF)
        a("v_and_b32", V(vb + 1), 15, V(L)); a("v_min_u32", V(vb + 1), 9, V(vb + 1))
        a("v_lshrrev_b32", V(vb + 2), 4, V(L))
        a("v_mad_u32_u24", V(vb), V(vb + 2), 10, V(vb + 1))
        a("v_mul_u32_u24", V(vb), 144, V(vb))
        a("v_add_u32", V(vb), s_lds, V(vb))
        a("v_bfe_u32", V(vb + 1), V(L), 3, 1)
        a("v_mad_u32_u24", V(vb + 2), V(vb + 2), 10, V(vb + 1))
        a("v_mul_u32_u24", V(vb + 2), 144, V(vb + 2))
        a("v_and_b32", V(vb + 1), 7, V(L))
        a("v_lshl_add_u32", V(vb + 2), V(vb + 1), 4, V(vb + 2))
        a("v_add_u32", V(vb + 2), s_lds, V(vb + 2))
        a("v_lshlrev_b32", V(vb + 1), 4, V(L))
        a("s_mov_b32", S(st + 2), "0x05040100"); a("s_mov_b32", S(st + 3), "0x07060302")
        O = self.O
        for k in range(8):
            for e2 in range(4):
                a("v_perm_b32", V(O + 4 * (k % 4) + e2), V(D + 4 * (2 * e2 + 1) + k // 2), V(D + 4 * (2 * e2) + k // 2), S(st + 2 + (k % 2)))
            a("ds_write_b128", V(vb), V(O + 4 * (k % 4), 4), mods=f"offset:{k*16}")
            if k == 3: a("s_waitcnt", "lgkmcnt(0)")
        for mt in range(5): a("ds_read_b128", V(D + 4 * mt, 4), V(vb + 2), mods=f"offset:{mt*288}")
        a("s_waitcnt", "lgkmcnt(0)")
        if part == 0: return
        self.stores(SR_WOF)
    def stores(self, SR_WOF):
        a, st, vb, L, D = self.a, self.st, self.vb, self.l, self.D
        a("s_mul_i32", S(st), self.cb, 5 * 131072)
        a("s_lshl_b32", S(st + 1), self.hT, 10)
        a("s_add_u32", S(st), S(st), S(st + 1))
        for mt in range(5):
            a("buffer_store_dwordx4", V(D + 4 * mt, 4), V(vb + 1), S(SR_WOF, 4), S(st), mods="offen sc1")
            a("s_add_u32", S(st), S(st), 131072)

class GateTask:
    def __init__(self, a, s_task, vLane, st):
        self.a = a; self.t = s_task; self.l = vLane; self.st = st; self.vb = 208; self.XR = 16; self.GR = 56
    def loads(self, SR_X, SR_GW):
        a, vb, st = self.a, self.vb, self.st
        a("v_lshrrev_b32", V(vb), 4, V(self.l))
        a("s_lshl_b32", S(st), self.t, 3)
        a("v_add_u32", V(vb), S(st), V(vb))
        a("v_mul_u32_u24", V(vb + 1), 1280, V(vb))
        a("v_and_b32", V(vb + 2), 15, V(self.l))
        a("v_lshlrev_b32", V(vb + 2), 4, V(vb + 2))
        a("v_add_u32", V(vb + 1), V(vb + 1), V(vb + 2))
        a("s_movk_i32", S(st), 4 * 1280)
        for i in range(5):
            a("buffer_load_dwordx4", V(self.XR + 4 * i, 4), V(vb + 1), S(SR_X, 4), 0, mods=f"offen offset:{i*256}")
            a("buffer_load_dwordx4", V(self.XR + 20 + 4 * i, 4), V(vb + 1), S(SR_X, 4), S(st), mods=f"offen offset:{i*256}")
            a("buffer_load_dwordx4", V(self.GR + 4 * i, 4), V(vb + 2), S(SR_GW, 4), 0, mods=f"offen offset:{i*256}")
    def compute(self, SR_G):
        a, vb = self.a, self.vb
        acc = [vb + 2, vb + 3, vb + 4, vb + 5]; T = vb + 6
        for k in range(4): a("v_mov_b32", V(acc[k]), 0)
        for i in range(20):
            for ps in range(2): a("v_dot2c_f32_bf16", V(acc[2 * ps + i % 2]), V(self.XR + 20 * ps + i), V(self.GR + i))
        a("s_nop", 3)
        a("v_add_f32", V(acc[0]), V(acc[0]), V(acc[1])); a("v_add_f32", V(acc[1]), V(acc[2]), V(acc[3]))
        for off in (0x041F, 0x081F, 0x101F, 0x201F):
            for k in range(2): a("ds_swizzle_b32", V(T + k), V(acc[k]), mods=f"offset:{hex(off)}")
            a("s_waitcnt", "lgkmcnt(0)")
            for k in range(2): a("v_add_f32", V(acc[k]), V(acc[k]), V(T + k))
        rnd2(a, T, acc[0], acc[1])
        for k in range(2):
            a("v_mul_f32", V(acc[k]), hex(f32bits(-math.log2(math.e))), V(acc[k]))
            a("v_exp_f32", V(acc[k]), V(acc[k]))
            a("v_add_f32", V(acc[k]), 1.0, V(acc[k]))
            a("v_rcp_f32", V(acc[k]), V(acc[k]))
        rnd2(a, T, acc[0], acc[1])
        a("v_lshlrev_b32", V(vb), 2, V(vb))
        a("buffer_store_dword", V(acc[0]), V(vb), S(SR_G, 4), 0, mods="offen sc1")
        a("buffer_store_dword", V(acc[1]), V(vb), S(SR_G, 4), 0, mods="offen offset:16 sc1")
```

```python
import sys
from build import *
import functools
which = sys.argv[1]
for tag in sys.argv[2:]:
    abl = tuple(tag.split("+"))
    ks = []
    for nm in which.split(","):
        mod = {"k1": k1.gen_k1, "k2": k2.gen_k2, "k12": k12.gen_k12, "k3": k3.gen_k3, "prep": side.gen_prep, "conv": side.gen_conv}[nm]
        ks.append(functools.partial(mod, abl=abl))
    build(ks, f"abl_{tag}.s")
```

```python
from common import *
from side import *
import k4
import math

QSCALE = math.log2(math.e) / math.sqrt(128.0)
NEG = 0xff000000
SLOT = 32768
K0OFF = 65536 + 57344
EPT = 119 * 1024
XCH = 131072
R_O = 16; R_Q = 80; R_S = [112, 128]; R_C = 144; R_P = [160, 168]; R_F = 176; R_T = 208; R_L = [216, 218]; R_X = 220
vLANE = 2; vKV = 3; vDMA = 4; vST = 5; vQI = 6
VA = [228, 229, 230, 231]; VB = [232, 233, 234, 235]; VX = [236, 237, 238, 239]; VW = [240, 241, 242, 243]
AL = [244, 245]; BL = [246, 247]; AA = [248, 249]; BA = [250, 251]; VST = [252, 253]; AA2 = [254, 255]
NV = 256
SR_CKV = 16; SR_W = 20; SR_KV = 24; SR_CTX = 44; SR_X = 52; SR_WQ = 56; SR_DBG = 60; SR_FL = 92

def opt(abl, key, default):
    for x in abl:
        if x.startswith(key) and x[len(key):].lstrip("-").isdigit(): return int(x[len(key):])
    return default

def gen_k12(a, name="main_kernel", abl=()):
    kernel_begin(a, name)
    done = a.newlabel("k12_done")
    a("s_cmp_ge_u32", "s2", 256)
    a("s_cbranch_scc1", done)
    st_ = Stamps(a, "stamp" in abl)
    st_.allreal = "rt" in abl
    st_.stamp(); st_.stamp(real=True)
    a("s_load_dwordx4", S(4, 4), S(0, 2), KA["x"])
    a("s_load_dwordx4", S(8, 4), S(0, 2), KA["wuk"])
    a("s_load_dwordx2", S(48, 2), S(0, 2), KA["wq"])
    a("s_load_dwordx4", S(36, 4), S(0, 2), KA["dbg"])
    if "nocpf" not in abl:
        CPL = 24
        a("s_getpc_b64", S(28, 2))
        pc0 = a.label(a.newlabel("cpf_pc"))
        a("s_lshr_b32", "s30", "s2", 3)
        a("s_mul_i32", "s30", "s30", CPL)
        a("v_min_u32", "v1", CPL - 1, "v0")
        a("v_add_u32", "v1", "s30", "v1")
        a("v_lshlrev_b32", "v1", 7, "v1")
        a("s_mov_b32", "s30", f"p4_table-{pc0}")
        a("v_min_u32", "v1", "s30", "v1")
        a("global_load_dword", V(227), "v1", S(28, 2))
    a("v_lshrrev_b32", "v1", 6, "v0")
    a("v_and_b32", "v2", 63, "v0")
    a("v_readfirstlane_b32", "s3", "v1", ann={"val": lambda c: c["wave"]})
    a("s_and_b32", "s12", "s2", 7)
    a("s_lshr_b32", "s13", "s2", 3)
    a("s_lshr_b32", "s14", "s13", 3)
    a("s_lshl_b32", "s12", "s12", 2)
    a("s_add_u32", "s12", "s12", "s14")
    a("s_and_b32", "s13", "s13", 7)
    a("s_lshr_b32", "s14", "s3", 2)
    a("s_and_b32", "s15", "s3", 3)
    t0, t1, t2, t3 = 8, 9, 10, 11
    a("v_lshrrev_b32", V(t1), 4, "v2")
    a("v_and_b32", V(t2), 7, "v2")
    a("v_xor_b32", V(t1), V(t1), V(t2))
    a("v_xor_b32", V(t2), 4, V(t1))
    a("v_lshlrev_b32", V(t1), 4, V(t1))
    a("v_lshlrev_b32", V(t2), 4, V(t2))
    a("v_lshrrev_b32", V(t3), 3, "v2")
    a("s_lshl_b32", "s28", "s13", 8)
    a("s_lshl_b32", "s29", "s3", 5)
    a("s_add_u32", "s28", "s28", "s29")
    a("v_add_u32", V(t0), "s28", V(t3))
    a("v_lshlrev_b32", V(t0), 10, V(t0))
    for i in range(4):
        a("v_add3_u32", V(VA[i]), V(t0), V(t1 if i % 2 == 0 else t2), 0)
        if i: a("v_add_u32", V(VA[i]), i * 8192 - i * 1024, V(VA[i]))
    w0, w1 = 12, 13
    a("v_bfe_u32", V(t0), "v2", 2, 2)
    a("v_lshlrev_b32", V(t0), 13, V(t0))
    a("v_lshrrev_b32", V(w0), 4, "v2")
    a("v_lshl_add_u32", V(t0), V(w0), 6, V(t0))
    a("s_lshl_b32", "s28", "s12", 8)
    a("v_add_u32", V(t0), "s28", V(t0))
    a("v_and_b32", V(w0), 3, "v2")
    a("v_xor_b32", V(w1), 2, V(w0))
    a("v_lshl_add_u32", V(w0), V(w0), 4, V(t0))
    a("v_lshl_add_u32", V(w1), V(w1), 4, V(t0))
    a("s_lshl_b32", "s28", "s15", 17)
    for i in range(4):
        a("s_add_u32", "s29", "s28", i * 32768 - i * 1024)
        a("v_add_u32", V(VB[i]), "s29", V(w0 if i < 2 else w1))
    a("s_lshl_b32", "s30", "s3", 12)
    a("s_add_u32", "s31", "s12", "s13")
    if "rot2" in abl: a("s_lshl_b32", "s29", "s31", 2)
    a("s_mul_i32", "s41", "s31", 52)
    a("s_lshr_b32", "s41", "s41", 8)
    a("s_mul_i32", "s41", "s41", 5)
    a("s_sub_u32", "s41", "s31", "s41")
    if "rot2" in abl: a("s_mov_b32", "s31", "s29")
    a("s_waitcnt", "lgkmcnt(0)")
    srd(a, SR_CKV, 6, SZ["ckv"])
    a("s_cmp_eq_u32", "s14", 0)
    a("s_cselect_b32", S(SR_W), "s8", "s10")
    a("s_cselect_b32", S(SR_W + 1), "s9", "s11")
    a("s_mov_b32", S(SR_W + 2), hex(SZ["wuk"]))
    a("s_mov_b32", S(SR_W + 3), "0x20000")
    vm = VmQ(a)
    entries = []
    for s in range(8): entries += [("A", s), ("B", s)]
    for i in range(5): entries += [("X", 2 * i), ("W", i), ("X", 2 * i + 1)]
    eidx = {e: n for n, e in enumerate(entries)}
    slot_of = lambda e: (eidx[e] % 5) * SLOT
    def dma(vmq, e):
        kind, s = e
        vv, sr, so = {"A": (VA, SR_CKV, s * 128), "B": (VB, SR_W, s * 64 * 8192), "X": (VX, SR_X, s * 128), "W": (VW, SR_WQ, s * 128 * 8192)}[kind]
        def mk(i):
            def f():
                if i == 0:
                    a("s_add_u32", "m0", "s30", slot_of(e))
                    if "rot" in abl and kind in "AB":
                        a("s_add_u32", "s32", "s31", s)
                        a("s_and_b32", "s32", "s32", 7)
                        a("s_lshl_b32", "s32", "s32", 7 if kind == "A" else 19)
                    elif "rotq" in abl and kind in "XW":
                        pr = s // 2 if kind == "X" else s
                        a("s_add_u32", "s32", "s41", pr)
                        a("s_cmp_ge_u32", "s32", 5)
                        a("s_cselect_b32", "s33", 5, 0)
                        a("s_sub_u32", "s32", "s32", "s33")
                        a("s_lshl_b32", "s32", "s32", 8 if kind == "X" else 20)
                        if kind == "X" and s % 2: a("s_add_u32", "s32", "s32", 128)
                    else:
                        a("s_mov_b32", "s32", so)
                nt = " nt" if (("ntw" in abl and kind in "BW") or ("nta" in abl and kind in "AX")) else ""
                vmq.issue(e, "buffer_load_dwordx4", V(vv[i]), S(sr, 4), "s32", mods=f"offen offset:{i*1024}{nt} lds")
            return f
        return [mk(i) for i in range(4)]
    for e in entries[0:2]:
        for f in dma(vm, e): f()
    srd(a, SR_KV, 38, 32 * MB)
    srd(a, SR_CTX, 38, 2048 * 4096 * 2, off=WS_CTX)
    srd(a, SR_X, 4, SZ["x"])
    srd(a, SR_WQ, 48, SZ["wq"])
    srd(a, SR_DBG, 36, 256)
    srd(a, SR_FL, 38, 32768, off=WS_FL2)
    ne = a.newlabel("noepoch")
    a("v_mov_b32", V(220), 0)
    a("v_mov_b32", V(222), 0); a("v_mov_b32", V(223), 0)
    a("s_lshl_b32", "s28", "s2", 3)
    a("s_add_u32", "s28", "s28", "s3")
    a("s_cmp_lg_u32", "s28", 4)
    a("s_cbranch_scc1", ne)
    a("s_mov_b64", "exec", 1)
    a("s_movk_i32", "s28", 8192)
    a("buffer_load_dword", V(222), V(220), S(SR_FL, 4), "s28", mods="offen sc1")
    a("s_waitcnt", "vmcnt(0)")
    a("v_add_u32", V(222), 1, V(222))
    a("v_mov_b32", V(223), 1)
    a("buffer_store_dwordx2", V(222, 2), V(220), S(SR_DBG, 4), 0, mods="offen sc1")
    a("buffer_store_dword", V(222), V(220), S(SR_FL, 4), "s28", mods="offen sc1")
    a("s_mov_b64", "exec", -1)
    a.label(ne)
    a("s_sub_u32", "s38", 15, "s13")
    a("s_cmp_eq_u32", "s14", 0)
    a("s_cselect_b32", "s39", "s38", "s13")
    a("s_lshl_b32", "s40", "s39", 2)
    a("s_add_u32", "s40", "s40", "s15")
    a("s_lshl_b32", "s28", "s40", 5)
    a("v_add_u32", V(t0), "s28", V(t3))
    a("v_mul_u32_u24", V(t0), 1280, V(t0))
    for i in range(4):
        a("v_add3_u32", V(VX[i]), V(t0), V(t1 if i % 2 == 0 else t2), 0)
        if i: a("v_add_u32", V(VX[i]), i * 8 * 1280 - i * 1024, V(VX[i]))
    a("s_lshl_b32", "s28", "s3", 17)
    for i in range(4):
        a("s_add_u32", "s29", "s28", i * 32768 - i * 1024)
        a("v_add_u32", V(VW[i]), "s29", V(w0 if i < 2 else w1))
    for e in entries[2:4]:
        for f in dma(vm, e): f()
    touches = []
    if "notouch" not in abl:
        tv = 14; TD = [216, 217, 218, 219]
        a("v_lshrrev_b32", V(t0), 1, "v2")
        a("v_and_b32", V(tv), 1, "v2")
        a("s_lshl_b32", "s29", "s13", 6); a("s_lshl_b32", "s33", "s15", 5); a("s_add_u32", "s29", "s29", "s33")
        a("v_add_u32", V(TD[0]), "s29", V(t0))
        a("v_lshlrev_b32", V(TD[0]), 13, V(TD[0]))
        a("v_lshl_add_u32", V(TD[0]), V(tv), 7, V(TD[0]))
        a("s_lshl_b32", "s33", "s12", 8)
        a("v_add_u32", V(TD[0]), "s33", V(TD[0]))
        if "lin" in abl:
            a("s_lshl_b32", "s29", "s2", 14); a("s_lshl_b32", "s33", "s15", 13); a("s_add_u32", "s29", "s29", "s33")
            a("v_lshlrev_b32", V(TD[0]), 7, "v2")
            a("v_add_u32", V(TD[0]), "s29", V(TD[0]))
        a("s_lshl_b32", "s29", "s2", 13)
        a("v_lshlrev_b32", V(TD[1]), 7, "v2")
        a("v_add_u32", V(TD[1]), "s29", V(TD[1]))
        a("s_mul_i32", "s29", "s2", 10240); a("s_and_b32", "s33", "s3", 1); a("s_lshl_b32", "s33", "s33", 13); a("s_add_u32", "s29", "s29", "s33")
        a("v_lshlrev_b32", V(TD[2]), 7, "v2")
        a("v_add_u32", V(TD[2]), "s29", V(TD[2]))
        a("s_mul_i32", "s29", "s13", 80); a("s_lshl_b32", "s33", "s15", 5); a("s_add_u32", "s29", "s29", "s33")
        a("v_add_u32", V(TD[3]), "s29", V(t0))
        a("v_lshlrev_b32", V(TD[3]), 13, V(TD[3]))
        a("v_lshl_add_u32", V(TD[3]), V(tv), 7, V(TD[3]))
        a("s_lshl_b32", "s33", "s12", 8)
        a("v_add_u32", V(TD[3]), "s33", V(TD[3]))
        if "linq" in abl:
            a("s_mul_i32", "s29", "s2", 20480); a("s_lshl_b32", "s33", "s15", 13); a("s_add_u32", "s29", "s29", "s33")
            a("v_lshlrev_b32", V(TD[3]), 7, "v2")
            a("v_add_u32", V(TD[3]), "s29", V(TD[3]))
        TA_ = opt(abl, "ta", 0); TB_ = opt(abl, "tb", 2)
        a("s_cmp_eq_u32", "s3", 2)
        for k in range(3): a("s_cselect_b32", S(96 + k), S(SR_CKV + k), S(SR_W + k))
        a("s_mov_b32", "s99", "0x20000")
        a("s_cselect_b64", "vcc", -1, 0)
        a("v_cndmask_b32", V(TD[0]), V(TD[0]), V(TD[1]), "vcc")
        a("s_cselect_b32", "s100", 0, "0x40000000")
        a("s_cmp_lt_u32", "s15", 2)
        a("s_cselect_b32", "s100", 0, "s100")
        if "nosm" not in abl:
            a("s_load_dwordx2", S(4, 2), S(0, 2), KA["shk"])
            a("s_load_dwordx4", S(8, 4), S(0, 2), KA["ssmd"])
            a("v_lshlrev_b32", V(TD[1]), 7, "v2")
            a("s_waitcnt", "lgkmcnt(0)")
            for w_, pr, nm in ((3, 4, "shk"), (6, 10, "gw"), (7, 8, "ssmd")):
                a("s_cmp_eq_u32", "s3", w_)
                a("s_cselect_b32", "s96", S(pr), "s96"); a("s_cselect_b32", "s97", S(pr + 1), "s97")
                a("s_cselect_b32", "s98", SZ[nm], "s98")
                a("s_cselect_b32", "s100", 0, "s100")
                a("s_cselect_b64", "vcc", -1, 0)
                a("v_cndmask_b32", V(TD[0]), V(TD[0]), V(TD[1]), "vcc")
        a("s_add_u32", "s28", "s14", 2)
        a("s_cmp_lt_u32", "s15", "s28")
        a("s_cselect_b32", "s101", 0, "0x40000000")
        if "nota" in abl: TA_ = 99
        if "notb" in abl: TB_ = 99
        touches = [(TA_, 0, TD[0], 96, "s100", None), (TB_, 30, TD[2], SR_X, "s101", 0), (TB_, 30, TD[3], SR_WQ, "s101", 1)]
        if "thinb" in abl:
            NB = opt(abl, "nb", 5); B0 = opt(abl, "b0", 1)
            lx = -(-20 // NB); lw = -(-20 // NB)
            a("s_mul_i32", "s29", "s2", 10240); a("s_mul_i32", "s33", "s15", 2560); a("s_add_u32", "s29", "s29", "s33")
            a("v_min_u32", V(TD[2]), lx - 1, "v2"); a("v_lshlrev_b32", V(TD[2]), 7, V(TD[2])); a("v_add_u32", V(TD[2]), "s29", V(TD[2]))
            a("s_mul_i32", "s29", "s13", 80); a("s_mul_i32", "s33", "s15", 20); a("s_add_u32", "s29", "s29", "s33")
            a("v_min_u32", V(TD[3]), lw - 1, V(t0)); a("v_add_u32", V(TD[3]), "s29", V(TD[3])); a("v_lshlrev_b32", V(TD[3]), 13, V(TD[3]))
            a("v_lshl_add_u32", V(TD[3]), V(tv), 7, V(TD[3]))
            a("s_lshl_b32", "s33", "s12", 8); a("v_add_u32", V(TD[3]), "s33", V(TD[3]))
            touches = touches[:1]
            for k in range(NB):
                touches += [(B0 + k, 30, TD[2], SR_X, k * lx * 128, 0), (B0 + k, 30, TD[3], SR_WQ, k * lw * 8192, 1)]
        if "xl2" in abl:
            XS = opt(abl, "xs", 5)
            a("s_lshr_b32", "s28", "s2", 3)
            a("s_mul_i32", "s28", "s28", 81920)
            a("s_lshl_b32", "s29", "s3", 13)
            a("s_add_u32", "s28", "s28", "s29")
            a("v_lshlrev_b32", V(224), 7, "v2")
            a("v_add_u32", V(224), "s28", V(224))
            a("s_cmp_lt_u32", "s3", 2)
            a("s_cselect_b32", "s42", 0, "0x40000000")
            a("s_add_u32", "s42", "s42", 65536)
            touches += [(XS, 30, 224, SR_X, 0, None), (XS + 1, 30, 224, SR_X, "s42", None)]
    def touch(k, vmq):
        (_, _, reg, sr_, so, _) = touches[k]
        def f():
            so_ = so
            if isinstance(so, int) and so:
                a("s_mov_b32", "s101", so); so_ = "s101"
            vmq.issue("t", "buffer_load_dword", V(208 + k % 8), V(reg), S(sr_, 4), so_, mods="offen")
        return f
    G = 1
    a("v_and_b32", V(t0), 15, "v2")
    a("v_lshrrev_b32", V(G), 4, "v2")
    a("v_lshlrev_b32", V(t3), 2, V(G))
    a("v_sub_u32", V(vQI), V(t0), V(t3))
    a("v_lshlrev_b32", V(7), 7, V(t0))
    a("v_bfe_u32", V(t1), "v2", 1, 3)
    a("v_xor_b32", V(t1), V(t1), V(G))
    for ks in range(2):
        a("v_xor_b32", V(AL[ks]), 4 * ks, V(t1))
        a("v_lshl_add_u32", V(AL[ks]), V(AL[ks]), 4, V(7))
    a("v_lshlrev_b32", V(t1), 11, V(G))
    a("v_bfe_u32", V(t0), "v2", 2, 2)
    a("v_lshl_add_u32", V(t1), V(t0), 6, V(t1))
    a("v_and_b32", V(t0), 3, "v2")
    a("v_lshl_add_u32", V(t1), V(t0), 3, V(t1))
    a("v_bfe_u32", V(t0), "v2", 4, 1)
    a("v_lshl_add_u32", V(BL[0]), V(t0), 5, V(t1))
    a("v_xor_b32", V(BL[1]), 32, V(BL[0]))
    a("s_lshr_b32", "s34", "s15", 1)
    a("s_lshl_b32", "s34", "s34", 14)
    a("s_lshl_b32", "s35", "s14", 14)
    a("s_and_b32", "s29", "s15", 1)
    a("s_lshl_b32", "s29", "s29", 9)
    a("s_add_u32", "s35", "s35", "s29")
    a("s_lshl_b32", "s28", "s12", 6)
    a("s_lshl_b32", "s29", "s13", 3)
    a("s_add_u32", "s28", "s28", "s29")
    a("s_lshr_b32", "s29", "s15", 1)
    a("s_lshl_b32", "s29", "s29", 2)
    a("s_add_u32", "s28", "s28", "s29")
    a("s_lshl_b32", "s28", "s28", 14)
    a("s_lshl_b32", "s29", "s14", 13)
    a("s_add_u32", "s28", "s28", "s29")
    a("s_and_b32", "s29", "s15", 1)
    a("s_add_u32", "s33", "s14", 11)
    a("s_lshl_b32", "s29", "s29", "s33")
    a("s_add_u32", "s28", "s28", "s29")
    a("v_lshlrev_b32", V(vKV), 4, "v2")
    a("v_add_u32", V(VST[0]), "s28", V(vKV))
    a("s_lshr_b32", "s29", 4096, "s14")
    a("v_add_u32", V(VST[1]), "s29", V(VST[0]))
    TOK = 16; WF = [48, 64]; ACC = 80; PK = 16
    tok = lambda kt: V(TOK + 4 * kt, 4)
    wf = lambda s, dt: V(WF[s] + 4 * dt, 4)
    accn = lambda kt, dt: ACC + 4 * (kt * 4 + dt)
    acc = lambda kt, dt: V(accn(kt, dt), 4)
    def kv_addr(s):
        a("s_add_u32", "s28", "s34", slot_of(("A", s)))
        a("s_add_u32", "s29", "s35", slot_of(("B", s)))
        for ks in range(2): a("v_add_u32", V(AA[ks]), "s28", V(AL[ks]))
        for p in range(2): a("v_add_u32", V(BA[p]), "s29", V(BL[p]))
    def rd_w(q, ks, dt, t):
        return lambda: q.issue("ds_read_b64_tr_b16", V(WF[ks] + 4 * dt + 2 * t, 2), V(BA[dt & 1]), mods=f"offset:{ks*8192 + t*1024 + (dt>>1)*256}")
    def rd_t(q, ks, kt):
        return lambda: q.issue("ds_read_b128", tok(kt), V(AA[ks]), mods=f"offset:{kt*2048}")
    BAR = 8
    def tail_reads(q):
        L = [(BAR, rd_w(q, 0, 0, 0)), (BAR, rd_w(q, 0, 0, 1)), (BAR + 1, rd_t(q, 0, 0)), (BAR + 1, rd_w(q, 0, 1, 0)),
             (BAR + 2, rd_w(q, 0, 1, 1)), (BAR + 2, rd_t(q, 0, 1)), (BAR + 3, rd_t(q, 0, 2))]
        L += [(BAR + 4, rd_w(q, 0, 2, 0)), (BAR + 5, rd_w(q, 0, 2, 1)), (BAR + 6, rd_w(q, 0, 3, 0)), (BAR + 7, rd_t(q, 0, 3)), (BAR + 8, rd_w(q, 0, 3, 1))]
        L += [(4 * kt + 3, rd_t(q, 0, kt)) for kt in range(4, 8)]
        return L
    kv_addr(0)
    early = [k for k, t in enumerate(touches) if t[0] == -1]
    if early:
        a("s_barrier")
        for k in early: touch(k, vm)()
    st_.stamp()
    vm.need(("A", 0), ("B", 0))
    a("s_barrier")
    st_.stamp()
    if "endst" in abl: a("s_endpgm")
    q0 = LdsQ(a)
    for _, f in tail_reads(q0): f()
    vm_entry = list(vm.q); q_entry = list(q0.q)
    lblV = a.newlabel("kv_v"); lblQ = a.newlabel("qphase")
    a("s_cmp_eq_u32", "s14", 0)
    a("s_cbranch_scc0", lblV)
    for grp in range(2):
        if grp == 1: a.label(lblV)
        q = LdsQ(a, q_entry); vm = VmQ(a, vm_entry)
        for s in range(8):
            for ks in range(2):
                fill = [[] for _ in range(32)]
                if ks == 0:
                    for kt in range(8): fill[4 * kt + 3].append(rd_t(q, 1, kt))
                    n = 0
                    for dt in range(4):
                        for t in range(2):
                            fill[4 * n + 1].append(rd_w(q, 1, dt, t)); n += 1
                    for i, f in enumerate(dma(vm, entries[2 * s + 4])): fill[8 * i + 2].append(f)
                    if s == 5 and grp == 1:
                        def eld():
                            sk = a.newlabel("noeld")
                            a("s_cmp_lg_u32", "s3", 4)
                            a("s_cbranch_scc1", sk)
                            a("buffer_load_dwordx2", V(222, 2), V(220), S(SR_DBG, 4), 0, mods="offen sc1")
                            a.label(sk)
                        fill[0].append(eld)
                    for k, tch in enumerate(touches):
                        if tch[0] == s and tch[5] in (None, grp): fill[tch[1]].append(touch(k, vm))
                else:
                    if s < 7:
                        for n, f in tail_reads(q): fill[n].append(f)
                        for i, f in enumerate(dma(vm, entries[2 * s + 5])): fill[BAR + 2 + 6 * i].append(f)
                    else:
                        for i, f in enumerate(dma(vm, entries[19]) + dma(vm, entries[20])): fill[BAR + 3 * i].append(f)
                for n in range(32):
                    kt, dt = n // 4, n % 4
                    if ks == 1 and n == BAR:
                        q.drain()
                        vm.need(entries[2 * s + 2], entries[2 * s + 3])
                        a("s_barrier")
                        if "kvst" in abl:
                            st_.n = 4 + s; st_.stamp()
                        if s < 7: kv_addr(s + 1)
                    q.need(tok(kt), wf(ks, dt))
                    c = acc(kt, dt) if (s or ks) else "0"
                    if grp == 0: a(MF16, acc(kt, dt), wf(ks, dt), tok(kt), c)
                    else: a(MF16, acc(kt, dt), tok(kt), wf(ks, dt), c)
                    for f in fill[n]: f()
        for n in range(16):
            ksub, u = n // 4, n % 4
            if grp == 0:
                kt2, Tp = u // 2, u % 2
                b0 = accn(2 * ksub + kt2, 2 * Tp); b1 = accn(2 * ksub + kt2, 2 * Tp + 1)
            else:
                b0 = accn(2 * ksub, u); b1 = accn(2 * ksub + 1, u)
            P = PK + 4 * n
            a("v_cvt_pk_bf16_f32", V(P), V(b0), V(b0 + 1))
            a("v_cvt_pk_bf16_f32", V(P + 1), V(b0 + 2), V(b0 + 3))
            a("v_cvt_pk_bf16_f32", V(P + 2), V(b1), V(b1 + 1))
            a("v_cvt_pk_bf16_f32", V(P + 3), V(b1 + 2), V(b1 + 3))
        if grp == 0:
            a("s_branch", lblQ); vm_after = list(vm.q)
        else:
            assert vm.q == vm_after
    a.label(lblQ)
    if "kvst" in abl:
        st_.stamp(real=True); st_.flush("s3", wg=opt(abl, "wg", 0)); a("s_endpgm"); st_.en = False
    if "endkv" in abl: a("s_endpgm")
    st_.stamp()
    QACC = 144; XF = [80, 96]; QW = 112
    qaccn = lambda dt, qt: QACC + 4 * (dt * 4 + qt)
    xf = lambda ks, qt: V(XF[ks] + 4 * qt, 4)
    qw = lambda dt: V(QW + 4 * dt, 4)
    a("s_xor_b32", "s34", "s30", 16384)
    a("s_lshl_b32", "s35", "s14", 9)
    def q_addr(s):
        a("s_add_u32", "s28", "s30", slot_of(("X", s)))
        a("s_add_u32", "s29", "s34", slot_of(("X", s)))
        for ks in range(2): a("v_add_u32", V(AA[ks]), "s28", V(AL[ks]))
        for ks in range(2): a("v_add_u32", V(AA2[ks]), "s29", V(AL[ks]))
        if s % 2 == 0:
            a("s_add_u32", "s28", "s35", slot_of(("W", s // 2)))
            for p in range(2): a("v_add_u32", V(BA[p]), "s28", V(BL[p]))
    q = LdsQ(a)
    def rq_w(s, ks, dt, ts=(0, 1)):
        def f():
            for t in ts:
                q.issue("ds_read_b64_tr_b16", V(QW + 4 * dt + 2 * t, 2), V(BA[dt & 1]), mods=f"offset:{(s%2)*16384 + ks*8192 + t*1024 + (dt>>1)*256}")
        return f
    def rq_x(ks, qt):
        return lambda: q.issue("ds_read_b128", xf(ks, qt), V((AA if qt < 2 else AA2)[ks]), mods=f"offset:{(qt%2)*2048}")
    def kvstore(n):
        def f():
            ksub, u = n // 4, n % 4
            if "nokvst" in abl: return
            a("s_mov_b32", "s33", ksub * 16384)
            vm.issue("st", "buffer_store_dwordx4", V(PK + 4 * n, 4), V(VST[u // 2]), S(SR_KV, 4), "s33", mods=f"offen offset:{(u%2)*1024}" + ("" if "plainst" in abl else " nt" if "ntst" in abl else " sc1 nt" if "sc1nt" in abl else " sc0 sc1" if "sc01" in abl else " sc1"))
        return f
    if "halfst" in abl:
        a("s_bitcmp1_b32", "s13", 0)
        a("s_cselect_b32", S(SR_KV + 2), 0, hex(32 * MB))
    q_addr(0)
    for f in [rq_w(0, 0, 0), rq_x(0, 0), rq_x(0, 1), rq_x(0, 2), rq_x(0, 3), rq_w(0, 0, 1), rq_w(0, 0, 2), rq_w(0, 0, 3)]: f()
    QBAR = 5
    SPS = opt(abl, "sps", 3)
    SIG = opt(abl, "sig", 7)
    POLL = opt(abl, "poll", 8)
    a("s_lshr_b32", "s42", "s38", 1)
    a("s_lshl_b32", "s42", 2, "s42")
    a("s_sub_u32", "s42", "s42", 1)
    a("s_lshl_b32", "s29", "s12", 7)
    a("v_and_b32", V(10), 7, "v2")
    a("v_lshlrev_b32", V(10), 2, V(10))
    a("v_add_u32", V(10), "s29", V(10))
    def pollload():
        a("buffer_load_dword", V(11), V(10), S(SR_FL, 4), 0, mods="offen sc1")
    def idma():
        L = []
        def k0():
            a("s_mov_b32", S(SR_KV + 2), hex(32 * MB))
            a("s_lshl_b32", "s28", "s12", 20)
            a("s_lshr_b32", "s29", "s30", 2)
            a("s_add_u32", "s43", "s28", "s29")
            a("s_add_u32", "m0", "s29", K0OFF)
            a("s_add_u32", "s28", "s28", "s30")
            a("buffer_load_dwordx4", V(vKV), S(SR_KV, 4), "s43", mods="offen sc1 lds")
        L.append(k0)
        for k in range(3):
            for i in range(4):
                def f(k=k, i=i):
                    if i == 0:
                        a("s_add_u32", "m0", "s30", k * 32768)
                        a("s_add_u32", "s43", "s28", 8192 + k * 32768)
                    a("buffer_load_dwordx4", V(vKV), S(SR_KV, 4), "s43", mods=f"offen offset:{i*1024} sc1 lds")
                L.append(f)
        return L
    nst = 0
    for s in range(10):
        for ks in range(2):
            fill = [[] for _ in range(16)]
            if ks == 0:
                if "qs" in abl:
                    for qt, sl in enumerate((1, 2, 5, 6)): fill[sl].append(rq_x(1, qt))
                    for dt in range(3):
                        fill[4 * dt + 3].append(rq_w(s, 1, dt, (0,))); fill[4 * dt + 4].append(rq_w(s, 1, dt, (1,)))
                    fill[15].append(rq_w(s, 1, 3))
                else:
                    for qt in range(4): fill[2 * qt].append(rq_x(1, qt))
                    for dt in range(4): fill[4 * dt + 3].append(rq_w(s, 1, dt))
                for k in range(SPS):
                    if nst < 16: fill[1 + (k * 14) // SPS].append(kvstore(nst)); nst += 1
                if s >= 8:
                    for n_ in range(16):
                        for z in range(2): fill[n_].append(lambda r=R_O + 32 * (s - 8) + 2 * n_ + z: a("v_mov_b32", V(r), 0))
                if s == 7:
                    for n_ in range(16): fill[n_].append(lambda r=228 + n_: a("v_mov_b32", V(r), 0))
            else:
                if s < 9 and "qs" in abl:
                    seq = [rq_w(s + 1, 0, 0, (0,)), rq_w(s + 1, 0, 0, (1,)), rq_x(0, 0), rq_x(0, 1), rq_x(0, 2), rq_x(0, 3),
                           rq_w(s + 1, 0, 1, (0,)), rq_w(s + 1, 0, 1, (1,)), rq_w(s + 1, 0, 2, (0,)), rq_w(s + 1, 0, 2, (1,)), rq_w(s + 1, 0, 3)]
                    for k_, f_ in enumerate(seq): fill[QBAR + k_].append(f_)
                elif s < 9:
                    fill[QBAR].append(rq_w(s + 1, 0, 0))
                    for qt in range(4): fill[QBAR + 1 + qt].append(rq_x(0, qt))
                    for dt in range(1, 4): fill[max(4 * dt + 3, QBAR + 3)].append(rq_w(s + 1, 0, dt))
                nx = []
                if s % 2 == 0 and s + 3 <= 9: nx = dma(vm, ("X", s + 3))
                if s % 2 == 1 and s + 3 <= 9: nx = dma(vm, ("X", s + 3)) + dma(vm, ("W", (s + 3) // 2))
                if s == 9: nx = idma()
                for i, f in enumerate(nx): fill[QBAR + (0 if s == 9 else 1) + (i * (15 - QBAR)) // len(nx)].append(f)
            for n in range(16):
                dt, qt = n // 4, n % 4
                if ks == 1 and n == QBAR:
                    q.drain()
                    need = [("X", s + 1), ("W", (s + 1) // 2)]
                    if s == SIG:
                        assert nst == 16
                        need.append("st")
                    vm.need(*need)
                    if s == 9: st_.stamp()
                    if s == 9:
                        skp = a.newlabel("skip_poll")
                        a("s_cmp_lg_u32", "s3", 4)
                        a("s_cbranch_scc1", skp)
                        a("s_mov_b32", "s41", 0)
                        a("s_waitcnt", "vmcnt(0)")
                        pl = a.label(a.newlabel("poll"))
                        a("v_cmp_eq_u32", S(28, 2), V(11), V(222), ann={"val": lambda c: 0xff})
                        a("s_and_b32", "s29", "s28", "s42")
                        a("s_cmp_eq_u32", "s29", "s42")
                        a("s_cbranch_scc1", skp)
                        a("s_sleep", 4)
                        pollload()
                        a("s_waitcnt", "vmcnt(0)")
                        a("s_add_u32", "s41", "s41", 1)
                        a("s_cmp_lt_u32", "s41", 1 << 19)
                        a("s_cbranch_scc1", pl)
                        a.label(skp)
                    a("s_barrier")
                    if s == POLL:
                        sk = a.newlabel("nopoll")
                        a("s_cmp_lg_u32", "s3", 4)
                        a("s_cbranch_scc1", sk)
                        pollload()
                        a.label(sk)
                    if s == SIG:
                        sk = a.newlabel("nosig"); ok = a.newlabel("epok")
                        a("s_cmp_lg_u32", "s3", 4)
                        a("s_cbranch_scc1", sk)
                        a("s_mov_b32", "s41", 0)
                        el = a.label(a.newlabel("eploop"))
                        a("v_readfirstlane_b32", "s29", V(223), ann={"val": lambda c: 1})
                        a("s_cmp_eq_u32", "s29", 1)
                        a("s_cbranch_scc1", ok)
                        a("s_sleep", 8)
                        a("buffer_load_dwordx2", V(222, 2), V(220), S(SR_DBG, 4), 0, mods="offen sc1")
                        a("s_waitcnt", "vmcnt(0)")
                        a("s_add_u32", "s41", "s41", 1)
                        a("s_cmp_lt_u32", "s41", 1 << 19)
                        a("s_cbranch_scc1", el)
                        a.label(ok)
                        a("s_lshl_b32", "s28", "s12", 7)
                        a("s_lshl_b32", "s29", "s13", 2)
                        a("s_add_u32", "s28", "s28", "s29")
                        a("s_mov_b64", "exec", 1)
                        a("buffer_store_dword", V(222), V(220), S(SR_FL, 4), "s28", mods="offen sc1")
                        a("s_mov_b64", "exec", -1)
                        a.label(sk)
                    if s < 9: q_addr(s + 1)
                q.need(qw(dt), xf(ks, qt))
                d = V(qaccn(dt, qt), 4)
                a(MF16, d, qw(dt), xf(ks, qt), d if (s or ks) else "0")
                for f in fill[n]: f()
    if "endq" in abl: a("s_endpgm")
    Qn = lambda qt, T: R_Q + 4 * (qt * 4 + T)
    Q = lambda qt, T: V(Qn(qt, T), 4)
    a("s_load_dwordx2", S(8, 2), S(0, 2), KA["wo"])
    a("s_load_dwordx4", S(4, 4), S(0, 2), KA["bk"])
    a("s_load_dwordx2", S(10, 2), S(0, 2), KA["ssmk"])
    a("v_mov_b32", V(12), hex(f32bits(QSCALE))); a("v_mov_b32", V(13), hex(f32bits(QSCALE)))
    a("s_add_u32", "s29", "s34", XCH)
    a("v_add_u32", V(8), "s29", V(vKV))
    a("s_add_u32", "s29", "s30", XCH)
    a("v_add_u32", V(9), "s29", V(vKV))
    def cvtq(dst, Tp, qt):
        for hf in range(2):
            b = qaccn(2 * Tp + hf, qt)
            for r_ in (0, 2): a("v_pk_mul_f32", V(b + r_, 2), V(b + r_, 2), V(12, 2))
            a("v_cvt_pk_bf16_f32", V(dst + 2 * hf), V(b), V(b + 1))
            a("v_cvt_pk_bf16_f32", V(dst + 2 * hf + 1), V(b + 2), V(b + 3))
    for qt in range(2):
        for Tp in range(2):
            d = QW + 4 * (qt * 2 + Tp)
            cvtq(d, Tp, 2 + qt)
            a("ds_write_b128", V(8), V(d, 4), mods=f"offset:{(qt*2+Tp)*1024}")
    a("s_lshl_b32", "s28", "s12", 20)
    a("s_lshl_b32", "s29", "s15", 13)
    a("s_add_u32", "s28", "s28", "s29")
    a("s_add_u32", "s28", "s28", 8192)
    a("v_add_u32", V(vDMA), "s28", V(vKV))
    a("s_lshl_b32", "s30", "s15", 13)
    a("s_add_u32", "s30", "s30", 3 * 32768)
    a("s_mov_b32", "s32", 3 * 32768)
    a("s_lshl_b32", "s33", "s38", 16)
    a("s_add_u32", "s33", "s33", 65536)
    a("s_lshl_b32", "s38", "s38", 1)
    a("s_mov_b32", "s39", 0)
    TL = opt(abl, "tl", 22)
    a("s_waitcnt", "lgkmcnt(0)")
    a("s_cmp_eq_u32", "s15", 0)
    a("s_cselect_b32", "s56", "s4", "s6"); a("s_cselect_b32", "s57", "s5", "s7")
    a("s_cmp_lt_u32", "s15", 2)
    a("s_cselect_b32", "s56", "s56", "s8"); a("s_cselect_b32", "s57", "s57", "s9")
    a("s_mov_b32", "s59", "0x20000")
    a("s_mul_i32", "s49", "s12", 5); a("s_add_u32", "s49", "s49", "s13"); a("s_sub_u32", "s49", "s49", 3)
    a("s_lshl_b32", "s49", "s49", 14)
    a("s_cmp_eq_u32", "s15", 3)
    a("s_cselect_b32", "s28", hex(SZ["bk"]), 0)
    a("s_add_u32", "s49", "s49", "s28")
    a("s_add_u32", "s58", "s49", 16384)
    a("s_cmp_lt_u32", "s13", 3)
    a("s_cselect_b32", "s58", 0, "s58")
    a("s_cselect_b32", "s49", 0, "s49")
    a("v_min_u32", V(14), TL - 1, V(vLANE))
    a("v_lshlrev_b32", V(14), 7, V(14))
    def adma(gate=False):
        def mk(i):
            def f():
                if i == 0 and gate:
                    a("s_cmp_lt_u32", "s32", "s33")
                    a("s_cselect_b32", S(SR_KV + 2), hex(32 * MB) if "zdma" not in abl else 0, 0)
                if i % 4 == 0:
                    a("s_add_u32", "m0", "s30", (i // 4) * 4096)
                    a("s_add_u32", "s35", "s32", (i // 4) * 4096)
                a("buffer_load_dwordx4", V(vDMA), S(SR_KV, 4), "s35", mods=f"offen offset:{(i%4)*1024} sc1 lds", ann={"half": 1})
                if i == 7 and not gate:
                    a("buffer_load_dword", V(15), V(14), S(56, 4), "s49", mods="offen")
                    a("s_add_u32", "s49", "s49", TL * 128)
                if i == 7:
                    a("s_add_u32", "s30", "s30", 32768)
                    a("s_and_b32", "s30", "s30", 131071)
                    a("s_add_u32", "s32", "s32", 32768)
            return f
        return [mk(i) for i in range(8)]
    a("s_mov_b32", "s28", hex(f32bits(QSCALE)))
    R_LM = [228, 236]; R_ONE = 244
    def zero_init():
        for i in range(16): a("v_mov_b32", V(R_C + i), 0)
        for i in range(4): a("v_mov_b32", V(R_ONE + i), "0x3f803f80")
    lg1 = a.newlabel("cv_g1"); lgd = a.newlabel("cv_done")
    a("s_cmp_eq_u32", "s14", 0)
    a("s_cbranch_scc0", lg1)
    for g in range(2):
        if g == 1: a.label(lg1)
        for qt in range(2):
            for Tp in range(2): cvtq(Qn(qt, 2 * g + Tp), Tp, qt)
        zero_init()
        a("s_waitcnt", "vmcnt(8) lgkmcnt(0)")
        a("s_barrier")
        for qt in range(2):
            for Tp in range(2):
                a("ds_read_b128", Q(qt, 2 * (1 - g) + Tp), V(9), mods=f"offset:{(qt*2+Tp)*1024}")
        if g == 0: a("s_branch", lgd)
    a.label(lgd)
    a("s_lshl_b32", "s28", "s40", 6)
    a("s_add_u32", "s28", "s28", "s12")
    a("s_lshl_b32", "s28", "s28", 12)
    a("v_add_u32", V(vST), "s28", V(vKV))
    a("s_mov_b32", "s42", hex(f32bits(2.0 ** 40)))
    a("s_mov_b32", "s43", hex(NEG))
    a("v_add_u32", V(R_X), K0OFF, V(vKV))
    On = lambda dt, qt: R_O + 4 * (dt * 2 + qt)
    O = lambda dt, qt: V(On(dt, qt), 4)
    Sn = lambda sb, kt2, qt: R_S[sb] + 4 * (kt2 * 2 + qt)
    Cn = lambda kt2, qt: R_C + 4 * (kt2 * 2 + qt)
    F = lambda i: V(R_F + 4 * i, 4)
    def apply_mask():
        a("v_mov_b32", V(R_X + 1), "s43")
        for r_ in range(4):
            a("v_cmp_le_i32", "vcc", r_, V(vQI))
            a("v_mov_b32", V(Cn(1, 0) + r_), V(R_X + 1))
            a("v_cndmask_b32", V(Cn(0, 0) + r_), V(R_X + 1), V(Cn(0, 0) + r_), "vcc")
            a("v_cndmask_b32", V(Cn(1, 1) + r_), V(R_X + 1), V(Cn(1, 1) + r_), "vcc")
    def rdK(q, i, p): return lambda: q.issue("ds_read_b128", F(i), V(vKV), mods=f"offset:{p*16384 + 8192 + i*1024}")
    def rdV(q, i, p): return lambda: q.issue("ds_read_b128", F(i), V(vKV), mods=f"offset:{p*16384 + i*1024}")
    R_LM = [228, 236]
    R_ONE = 244
    MSUM = True
    Lr = lambda sb, qt: R_LM[sb] + 4 * qt
    CHK = 47
    ET = [t + 0.5 for t in (10, 12, 14, 16, 18, 20, 22, 24, 26, 28, 30, 32, 34)] + [35.8, 36.5, 38.5]
    CT = [t + 0.5 for t in (17, 19, 23, 27, 31, 33, 37, 39)]
    def sm(sb):
        ops = []
        order = [(0, 0, 0), (0, 0, 1), (0, 1, 0), (0, 1, 1), (1, 0, 0), (1, 0, 1), (1, 1, 0), (1, 1, 1)]
        for ne, t in enumerate(ET):
            kt2, qt, pi = order[ne // 2]
            ops.append((t, lambda s0=Sn(sb, kt2, qt) + 2 * pi + ne % 2, ta=R_T + ne % 8: a("v_exp_f32", V(ta), V(s0))))
        for nc, t in enumerate(CT):
            kt2, qt, pi = order[nc]
            ops.append((t, lambda ta=R_T + (2 * nc) % 8, d=R_P[sb] + 4 * qt + 2 * kt2 + pi: a("v_cvt_pk_bf16_f32", V(d), V(ta), V(ta + 1))))
        for qt, t in ((0, 35.7), (1, 40.7)):
            ops.append((t, lambda qt=qt: a(MF16, V(Lr(sb, qt), 4), V(R_ONE, 4), V(R_P[sb] + 4 * qt, 4), V(Lr(sb ^ 1, qt), 4))))
        ops.append((43.5, lambda: a("v_cmp_nge_f32", S(50, 2), "s42", V(Lr(sb, 0)))))
        ops.append((45.5, lambda: a("v_cmp_nge_f32", "vcc", "s42", V(Lr(sb, 1)))))
        ops.append((46.1, lambda: a("s_or_b64", "vcc", "vcc", S(50, 2))))
        ops.sort(key=lambda x: x[0])
        return ops
    stubs = []
    def check(sb):
        ret = a.newlabel("ret"); stub = a.newlabel("stub")
        stubs.append((stub, ret, sb))
        a("s_cbranch_vccnz", stub)
        a.label(ret)
    def rowmax(sb):
        for qt in range(2):
            m = R_X + 2 + qt; s0 = Sn(sb, 0, qt); s1 = Sn(sb, 1, qt)
            a("v_max3_f32", V(m), V(s0), V(s0 + 1), V(s0 + 2))
            a("v_max3_f32", V(m), V(m), V(s0 + 3), V(s1))
            a("v_max3_f32", V(m), V(m), V(s1 + 1), V(s1 + 2))
            a("v_max_f32", V(m), V(m), V(s1 + 3))
        for op in ("v_permlane32_swap_b32", "v_permlane16_swap_b32"):
            for qt in range(2): a("v_mov_b32", V(R_X + 4 + qt), V(R_X + 2 + qt))
            for qt in range(2):
                a(op, V(R_X + 2 + qt), V(R_X + 4 + qt))
                a("v_max_f32", V(R_X + 2 + qt), V(R_X + 2 + qt), V(R_X + 4 + qt))
    def mf(q, tau, sbX, sbY):
        n = tau % 16; i, qt = n // 2, n % 2
        q.need(F(i))
        if tau < 16:
            kt2, T = i // 4, i % 4
            d = V(Sn(sbX, kt2, qt), 4)
            a(MF16, d, F(i), Q(qt, T), V(Cn(kt2, qt), 4) if T == 0 else d)
        else:
            a(MF16, O(i, qt), F(i), V(R_P[sbY] + 4 * qt, 4), O(i, qt))
    nomask = a.newlabel("nomask0")
    a("s_cmp_lg_u32", "s40", 0)
    a("s_cbranch_scc1", nomask)
    apply_mask()
    a.label(nomask)
    st_.stamp()
    q = LdsQ(a)
    for i in range(8): q.issue("ds_read_b128", F(i), V(R_X), mods=f"offset:{i*1024}")
    q.drain()
    a("s_barrier")
    ne2 = a.newlabel("noepw")
    a("s_cmp_lg_u32", "s3", 4)
    a("s_cbranch_scc1", ne2)
    a("v_mov_b32", V(8), k4.EPL)
    a("ds_write_b32", V(8), V(222))
    a("v_mov_b32", V(10), 0)
    a("ds_write_b32", V(8), V(10), mods="offset:4")
    a("ds_write_b32", V(8), V(10), mods="offset:8")
    a("s_waitcnt", "lgkmcnt(0)")
    a.label(ne2)
    skp2 = a.newlabel("skip_r1")
    a("s_cmp_eq_u32", "s14", 0)
    a("s_cbranch_scc1", skp2)
    for f in adma(): f()
    a.label(skp2)
    for tau in range(16):
        mf(q, tau, 0, None)
        if tau % 2 == 1: rdK(q, tau // 2, 0)()
    rowmax(0)
    for qt in range(2):
        for kt2 in range(2):
            for r_ in range(4):
                a("v_sub_f32", V(Sn(0, kt2, qt) + r_), V(Sn(0, kt2, qt) + r_), V(R_X + 2 + qt))
                a("v_sub_f32", V(Cn(kt2, qt) + r_), 0, V(R_X + 2 + qt))
    for t, f in sm(0):
        if t < 32: f()
    q.need(F(0), F(1), F(2), F(3))
    a("s_cmp_eq_u32", "s14", 0)
    a("s_cselect_b32", "s28", 0, 1)
    wl = a.newlabel("w8"); wl2 = a.newlabel("w8b")
    a("s_cbranch_scc0", wl)
    a("s_waitcnt", "vmcnt(0)")
    a("s_branch", wl2)
    a.label(wl)
    a("s_waitcnt", "vmcnt(9)")
    a.label(wl2)
    a("s_mov_b32", "s34", "s40")
    entry = list(q.q)
    tails = [a.newlabel(f"tail{p}") for p in range(4)]
    specials = []
    lblB = a.newlabel("loopB")
    a("s_cmp_eq_u32", "s14", 0)
    a("s_cbranch_scc0", lblB)
    PRI = opt(abl, "pri", 5)
    for grp, fast in ((0, 1), (0, 0), (1, 1), (1, 0)):
        if grp == 1 and fast: a.label(lblB)
        if fast:
            slowl = a.newlabel("attn_slow")
            a("s_cmp_lt_u32", "s34", 5)
            a("s_cbranch_scc1", slowl)
            loop = a.label(a.newlabel("attn_loop"))
        else:
            loop = a.label(slowl)
        q = LdsQ(a, entry)
        for p in range(4):
            sb = p & 1
            if not fast:
                sp = a.newlabel("special"); back = a.newlabel("back")
                specials.append((sp, back, p, grp))
                a("s_cmp_le_u32", "s34", 1)
                a("s_cbranch_scc1", sp)
                a.label(back)
            assert q.q == entry
            ev = []
            W = lambda *fr: (lambda: q.need(*[F(k) for k in fr]))
            pn = (p + 1) % 4
            ev += [(2 * i + 1.2, rdV(q, i, p)) for i in range(8)]
            ev += [(6.1, W(4, 5, 6, 7)), (12.1, W(0, 1, 2, 3)), (30.1, W(0, 1, 2, 3))]
            if p % 2 == 0:
                ev += [(17 + 2 * i + 0.2, rdK(q, i, pn)) for i in range(8)]
                ev += [(22.1, W(4, 5, 6, 7))]
            else:
                def hook():
                    q.drain()
                    if grp == 1:
                        a("s_waitcnt", "vmcnt(19)")
                        a("s_barrier", ann={"abar": 1})
                        a("s_add_u32", "s39", "s39", 1)
                    elif p == 1 and not fast:
                        nb = a.newlabel("nobar")
                        a("s_cmp_lt_u32", "s34", 2)
                        a("s_cbranch_scc1", nb)
                        a("s_barrier")
                        a.label(nb)
                    else:
                        a("s_barrier")
                    if p == 3: a("v_xor_b32", V(vKV), 65536, V(vKV))
                ev += [(22.1, hook)]
                ev += [(t, rdK(q, i, pn)) for i, t in enumerate((22.2, 23.2, 23.3, 25.2, 25.3, 27.2, 29.2, 31.2))]
                if grp == 1:
                    for i, f in enumerate(adma()): ev.append((24.05 + i, f))
            for t, f in sm(sb):
                if t >= 32: ev.append((t - 32, f))
            for t, f in sm(sb ^ 1):
                if t < 32: ev.append((t, f))
            ev.append((CHK - 32 + 0.5, lambda: check(sb)))
            if not fast: ev.append((8.1, lambda: a("s_sub_u32", "s34", "s34", 1)))
            elif p == 0: ev.append((8.1, lambda: a("s_sub_u32", "s34", "s34", 4)))
            if grp == 1 and PRI:
                if p == 0: ev.append((0.1, lambda: a("s_setprio", 1)))
                if PRI // 2 == p: ev.append((0.1 if PRI % 2 == 0 else 16.1, lambda: a("s_setprio", 0)))
            ev.sort(key=lambda x: x[0])
            k = 0
            for tau in range(32):
                mf(q, tau, sb ^ 1, sb)
                while k < len(ev) and ev[k][0] < tau + 1:
                    ev[k][1](); k += 1
            assert k == len(ev)
        assert q.q == entry, (q.q, entry)
        if fast:
            a("s_cmp_ge_u32", "s34", 5)
            a("s_cbranch_scc1", loop)
        else:
            a("s_branch", loop)
    for sp, back, p, grp in specials:
        a.label(sp)
        a("s_cmp_eq_u32", "s34", 0)
        a("s_cbranch_scc1", tails[p])
        apply_mask()
        a("s_branch", back)
    epi = a.newlabel("epi")
    for p in range(4):
        a.label(tails[p])
        sb = p & 1
        q = LdsQ(a, entry)
        for i in range(8): rdV(q, i, p)()
        for t, f in sm(sb):
            if t >= 32: f()
        check(sb)
        for tau in range(16, 32): mf(q, tau, None, sb)
        for qt in range(2): a("v_mov_b32", V(R_L[0] + qt), V(Lr(sb, qt)))
        a("s_branch", epi)
    rare_lbl = [a.newlabel("rare0"), a.newlabel("rare1")]
    for k, (stub, ret, sb) in enumerate(stubs):
        a.label(stub)
        a("s_mov_b32", "s48", k)
        a("s_branch", rare_lbl[sb])
    for sb in range(2):
        a.label(rare_lbl[sb])
        a("s_nop", 7)
        rowmax(sb)
        for qt in range(2):
            m = R_X + 2 + qt; f_ = R_X + 4 + qt
            a("v_max_f32", V(f_), 1.0, V(Lr(sb ^ 1, qt)))
            a("v_log_f32", V(f_), V(f_))
            a("v_max_f32", V(m), V(f_), V(m))
            a("v_sub_f32", V(f_), 0, V(m))
            a("v_exp_f32", V(f_), V(f_))
        for qt in range(2):
            m = R_X + 2 + qt; f_ = R_X + 4 + qt
            for dt in range(8):
                for r_ in range(4): a("v_mul_f32", V(On(dt, qt) + r_), V(f_), V(On(dt, qt) + r_))
            for r_ in range(4): a("v_mul_f32", V(Lr(sb ^ 1, qt) + r_), V(f_), V(Lr(sb ^ 1, qt) + r_))
            for kt2 in range(2):
                for r_ in range(4):
                    for reg in (Sn(sb, kt2, qt), Sn(sb ^ 1, kt2, qt), Cn(kt2, qt)):
                        a("v_sub_f32", V(reg + r_), V(reg + r_), V(m))
        for t, f in sm(sb):
            if t < 43: f()
        for t, f in sm(sb ^ 1):
            if t < CHK - 32 + 0.5: f()
        a("s_nop", 7)
        mine = [(k, ret) for k, (stub, ret, s2) in enumerate(stubs) if s2 == sb]
        for k, ret in mine[:-1]:
            a("s_cmp_eq_u32", "s48", k)
            a("s_cbranch_scc1", ret)
        a("s_branch", mine[-1][1])
    a.label(epi)
    a("s_setprio", 0)
    ep2 = a.newlabel("epi_b")
    a("s_cmp_lg_u32", "s14", 0)
    a("s_cbranch_scc1", ep2)
    a("s_waitcnt", "vmcnt(0)")
    a.label(ep2)
    L = R_L[0]
    for op in (() if MSUM else ("v_permlane32_swap_b32", "v_permlane16_swap_b32")):
        for qt in range(2): a("v_mov_b32", V(R_X + 4 + qt), V(L + qt))
        for qt in range(2):
            a(op, V(L + qt), V(R_X + 4 + qt))
            a("v_add_f32", V(L + qt), V(L + qt), V(R_X + 4 + qt))
    for qt in range(2): a("v_rcp_f32", V(L + qt), V(L + qt))
    a("s_mov_b32", "s28", 0)
    a("s_mov_b32", "s29", 32 * 4096)
    n = 0
    for qt in range(2):
        for T in range(4):
            P = R_F + 4 * (n % 8); n += 1
            for hf in range(2):
                b = On(2 * T + hf, qt)
                for r_ in range(4): a("v_mul_f32", V(b + r_), V(L + qt), V(b + r_))
                a("v_cvt_pk_bf16_f32", V(P + 2 * hf), V(b), V(b + 1))
                a("v_cvt_pk_bf16_f32", V(P + 2 * hf + 1), V(b + 2), V(b + 3))
            a("buffer_store_dwordx4", V(P, 4), V(vST), S(SR_CTX, 4), "s28" if qt == 0 else "s29", mods=f"offen offset:{T*1024}" + " sc1")
    fin = a.newlabel("fin")
    a("s_cmp_eq_u32", "s14", 0)
    a("s_cbranch_scc1", fin)
    a("s_mov_b32", "s41", 0)
    for r_ in (208, 209, 210, 211, 212): a("v_mov_b32", V(r_), 0)
    a("s_mov_b64", S(50, 2), S(SR_KV, 2))
    a("s_mul_i32", "s19", "s12", 5)
    a("s_add_u32", "s19", "s19", "s13")
    a("s_lshl_b32", "s19", "s19", 2)
    a("s_add_u32", "s19", "s19", "s15")
    a("s_lshl_b32", "s16", "s12", 3); a("s_sub_u32", "s28", "s13", 5); a("s_lshl_b32", "s28", "s28", 2)
    a("s_add_u32", "s16", "s16", "s28"); a("s_add_u32", "s16", "s16", "s15")
    a("s_mul_i32", "s22", "s15", 6144)
    a("s_add_u32", "s22", "s22", XCH)
    a("v_mov_b32", V(9), k4.EPL)
    a("ds_read_b32", V(13), V(9))
    a("s_load_dwordx2", S(8, 2), S(0, 2), KA["wo"])
    a("s_load_dwordx4", S(4, 4), S(0, 2), KA["bk"])
    a("s_load_dwordx2", S(10, 2), S(0, 2), KA["shk"])
    a("s_load_dwordx2", S(36, 2), S(0, 2), KA["gw"])
    a("v_mov_b32", V(12), 0)
    a("s_waitcnt", "lgkmcnt(0)")
    a("s_mov_b32", "s23", 0)
    a("s_mov_b32", "s20", 0)
    a("s_lshl_b32", "s21", "s13", 1)
    a("s_sub_u32", "s21", opt(abl, "ps", 16), "s21")
    def wl2():
        srd(a, 96, 8, SZ["wo"])
        a("s_lshr_b32", "s28", "s2", 3); a("s_lshl_b32", "s28", "s28", 7); a("s_lshl_b32", "s29", "s15", 5); a("s_add_u32", "s28", "s28", "s29")
        a("v_lshrrev_b32", V(248), 1, V(vLANE)); a("v_add_u32", V(248), "s28", V(248)); a("v_mul_u32_u24", V(248), 1280, V(248))
        a("v_and_b32", V(249), 1, V(vLANE)); a("v_lshl_add_u32", V(249), V(249), 7, V(248))
        a("s_and_b32", "s28", "s2", 1); a("s_mul_i32", "s28", "s28", 640)
        a("buffer_load_dword", V(250), V(249), S(96, 4), "s28", mods="offen")
        a("buffer_load_dword", V(251), V(249), S(96, 4), "s28", mods="offen offset:256")
        a("buffer_load_dword", V(252), V(248), S(96, 4), "s28", mods="offen offset:512")
    ld3 = a.newlabel("loader3"); ld2 = a.newlabel("loader2"); lde = a.newlabel("loader_early")
    ld = a.label(a.newlabel("loader"))
    a("s_cmp_lt_u32", "s41", 3)
    a("s_cbranch_scc1", lde)
    a("s_waitcnt", "vmcnt(16)")
    a.label(lde)
    a("s_waitcnt", "vmcnt(24)")
    a.label(ld2)
    a("s_add_u32", "s39", "s39", 1)
    a("s_cmp_lt_u32", "s39", "s38")
    a("s_cbranch_scc0", ld3)
    a("s_barrier", ann={"abar": 1})
    for f in adma(gate=True): f()
    a("s_add_u32", "s41", "s41", 1)
    a("s_cmp_lt_u32", "s39", "s21")
    a("s_cbranch_scc1", ld)
    a("s_add_u32", "s20", "s20", 1)
    if "wl2" in abl:
        nw = a.newlabel("nowl2")
        a("s_cmp_lg_u32", "s23", 0)
        a("s_cbranch_scc1", nw)
        a("s_add_u32", "s28", "s39", opt(abl, "wr", 5))
        a("s_cmp_lt_u32", "s28", "s38")
        a("s_cbranch_scc1", nw)
        a("s_mov_b32", "s23", 1)
        wl2()
        a.label(nw)
    UT = UtTask(a, "s19", vLANE, 88); GT = GateTask(a, "s16", vLANE, 88)
    def flag(off_fn):
        off_fn()
        a("s_mov_b64", "exec", 1)
        a("buffer_store_dword", V(13), V(12), S(SR_FL, 4), "s28", mods="offen sc1")
        a("s_mov_b64", "exec", -1)
    def fu():
        UT.ids()
        a("s_lshl_b32", "s28", S(UT.st + 1), 8); a("s_lshl_b32", "s29", S(UT.st), 2); a("s_add_u32", "s28", "s28", "s29"); a("s_add_u32", "s28", "s28", k4.FL_P)
    def fg():
        a("s_lshl_b32", "s28", "s16", 2); a("s_add_u32", "s28", "s28", k4.FL_G)
    mk = lambda d, pair, nm: srd(a, d, pair, SZ[nm])
    def wtouch():
        mk(96, 8, "wo")
        a("s_mul_i32", "s28", "s12", 6); a("s_add_u32", "s28", "s28", "s13"); a("s_lshl_b32", "s28", "s28", 2); a("s_add_u32", "s28", "s28", "s15")
        a("s_lshl_b32", "s28", "s28", 13)
        a("v_lshlrev_b32", V(200), 7, V(vLANE))
        a("buffer_load_dword", V(201), V(200), S(96, 4), "s28", mods="offen")
    planP = [(lambda: UT.loads(mk, 96), 15), (None, 0),
             (lambda: (a("s_waitcnt", "vmcnt(16)"), UT.compute(None, "s22", part=0)), 0),
             (lambda: UT.compute(None, "s22", part=1), 0),
             (lambda: UT.compute(None, "s22", part=2), 0),
             (lambda: (UT.compute(None, "s22", part=3), srd(a, 96, 50, 640 * 4096, off=WS_UT), UT.compute(96, "s22", part=4)), 4),
             (None, 0), (None, 0),
             (lambda: (a("s_waitcnt", "vmcnt(24)"), flag(fu)), 1)]
    planG = [(lambda: (mk(96, 36, "gw"), GT.loads(SR_X, 96)), 15),
             (None, 0),
             (lambda: (a("s_waitcnt", "vmcnt(16)"), srd(a, 96, 50, 2048 * 4, off=WS_G), GT.compute(96)), 2)]
    lg_ = a.newlabel("plan_gate")
    if "nopl" in abl: a("s_branch", ld)
    a("s_cmp_eq_u32", "s13", 7)
    a("s_cbranch_scc1", ld)
    a("s_cmp_gt_u32", "s13", 4)
    a("s_cbranch_scc1", lg_)
    for plan in (planP, planG):
        if plan is planG: a.label(lg_)
        lbls = [a.newlabel(f"pstep{k}") for k in range(len(plan))]
        for k in range(len(plan)):
            a("s_cmp_eq_u32", "s20", k + 1)
            a("s_cbranch_scc1", lbls[k])
        a("s_branch", ld)
        for k, (fn, n) in enumerate(plan):
            a.label(lbls[k])
            if fn and "nopp" not in abl: a("s_setprio", 3)
            if fn: fn()
            if fn and "nopp" not in abl: a("s_setprio", 0)
            prev = plan[k - 1][1] if k else 0
            pprev = plan[k - 2][1] if k > 1 else 0
            extra = 0
            a("s_waitcnt", f"vmcnt({min(55, 16 + n + prev + pprev + extra)})")
            a("s_branch", ld2)
    a.label(ld3)
    a("s_waitcnt", "vmcnt(0)")
    a("s_barrier")
    ngf = a.newlabel("nogflag")
    a("s_sub_u32", "s28", "s13", 5)
    a("s_cmp_gt_u32", "s28", 1)
    a("s_cbranch_scc1", ngf)
    flag(fg)
    a.label(ngf)
    if "wl2" in abl:
        nw2 = a.newlabel("nowl2b")
        a("s_cmp_lg_u32", "s23", 0)
        a("s_cbranch_scc1", nw2)
        wl2()
        a("s_waitcnt", "vmcnt(0)")
        a.label(nw2)
    a.label(fin)
    st_.stamp()
    if "nop4" not in abl: k4.phase4(a, abl, st_, SR_FL, done)
    st_.stamp()
    st_.stamp(real=True)
    st_.flush("s3", wg=opt(abl, "wg", 0))
    a.label(done)
    a("s_endpgm")
    a.raw(k4.table_text(abl))
    pol_rare = lambda i, c: (i.op == "s_cbranch_vccnz" and c % 3 == 1) or (i.op in ("s_cbranch_vccz", "s_cbranch_scc1") and c == 2)
    pol_norm = lambda i, c: (i.op == "s_cbranch_vccz") or (i.op == "s_cbranch_scc1")
    return dict(name=name, vgpr=NV, grid=256, block=512, lds=160 * 1024, waves=8, check_wgs=[0, 8, 24, 32, 40, 48, 56, 255], policies=[pol_norm, pol_rare], barinfo=True)
```

```python
from common import *
from side import *

EPL = 160 * 1024 - 64
FL_P = 4096
FL_Y2 = 10240
FL_C = 16384
FL_G = 28672

def tile_table():
    tab = [None] * 256
    for half in range(2):
        tiles = []
        for c in range(5):
            cbk = half * 5 + c
            if c < 3: st = [(min(5 * k, 123), 5) for k in range(26)]
            else: st = [(6 * k, 6) for k in range(3)] + [(18 + 5 * k, 5) for k in range(22)]
            tiles += [(q, n, cbk) for q, n in st]
        tiles.sort(key=lambda t: (t[0], t[2]))
        assert len(tiles) == 128
        for qd in range(4):
            mine = tiles[16 * qd:16 * qd + 16] + tiles[64 + 16 * qd:64 + 16 * qd + 16]
            xcd = 2 * qd + half
            for idx, t in enumerate(mine): tab[idx * 8 + xcd] = t
    cover = set()
    for q, n, c in tab:
        for k in range(n): cover.add((q + k, c))
    assert len(cover) == 1280
    return tab
TAB = tile_table()
def pack(t): return t[0] | (t[1] << 8) | (t[2] << 16)

def phase4(a, abl, st_, SR_FL, done):
    tabl = "p4_table"
    a("s_load_dwordx2", S(4, 2), S(0, 2), KA["x"])
    a("s_load_dwordx2", S(6, 2), S(0, 2), KA["ws"])
    a("s_load_dwordx2", S(8, 2), S(0, 2), KA["out"])
    a("s_load_dwordx2", S(10, 2), S(0, 2), KA["wo"])
    a("s_load_dwordx4", S(48, 4), S(0, 2), KA["ssmk"])
    a("s_getpc_b64", S(28, 2))
    pc = a.label(a.newlabel("p4_pc"))
    a("s_add_u32", "s28", "s28", f"{tabl}-{pc}")
    a("s_addc_u32", "s29", "s29", 0)
    a("s_lshl_b32", "s30", "s2", 2)
    a("s_load_dword", "s13", S(28, 2), "s30", ann={"val": lambda c: pack(TAB[c["wg"]])})
    a("v_mov_b32", "v14", EPL)
    a("ds_read_b32", "v13", "v14")
    a("v_lshlrev_b32", "v3", 4, "v2")
    a("s_lshl_b32", "s41", "s40", 7)
    a("s_lshl_b32", "s31", "s12", 2)
    a("s_add_u32", "s41", "s41", "s31")
    a("s_add_u32", "s41", "s41", FL_C)
    a("s_and_b32", "s58", "s38", 2)
    a("s_lshl_b32", "s58", "s58", 15)
    a("s_xor_b32", "s57", "s58", 65536)
    a("v_mov_b32", "v12", 0)
    def sig(val, soff):
        a("s_mov_b64", "exec", 1)
        a("buffer_store_dword", val, "v12", S(SR_FL, 4), soff, mods="offen sc1")
        a("s_mov_b64", "exec", -1)
    def ldsinc(off):
        a("v_mov_b32", "v1", 1)
        a("s_mov_b64", "exec", 1)
        a("ds_add_u32", "v14", "v1", mods=f"offset:{off}")
        a("s_mov_b64", "exec", -1)
    def ldswait(off):
        a("s_mov_b32", "s31", 0)
        gw = a.label(a.newlabel("p4_gw")); gok = a.newlabel("p4_gok")
        a("ds_read_b32", "v11", "v14", mods=f"offset:{off}")
        a("s_waitcnt", "lgkmcnt(0)")
        a("v_readfirstlane_b32", "s28", "v11", ann={"val": lambda c: 4})
        a("s_cmp_ge_u32", "s28", 4)
        a("s_cbranch_scc1", gok)
        a("s_sleep", 2)
        a("s_add_u32", "s31", "s31", 1)
        a("s_cmp_lt_u32", "s31", 1 << 19)
        a("s_cbranch_scc1", gw)
        a.label(gok)
    a("s_waitcnt", "lgkmcnt(0)")
    conv = a.newlabel("p4_conv")
    srd(a, 36, 6, 640 * 4096, off=WS_Y2T)
    a("s_cmp_ge_u32", "s3", 4); a("s_cbranch_scc1", conv)
    ldsinc(8)
    a("s_setprio", 2)
    a("s_and_b32", "s14", "s13", 255)
    a("s_lshr_b32", "s15", "s13", 16)
    a("s_bfe_u32", "s28", "s13", "0x80008")
    a("s_add_u32", "s28", "s28", "s14")
    a("s_sub_u32", "s28", "s28", 1)
    a("s_lshr_b32", "s28", "s28", 1)
    a("s_lshr_b32", "s29", "s14", 1)
    a("v_lshrrev_b32", "v15", 3, "v2")
    a("v_add_u32", "v15", "s29", "v15")
    a("v_min_u32", "v15", "s28", "v15")
    a("v_lshlrev_b32", "v15", 7, "v15")
    a("v_and_b32", "v1", 7, "v2")
    a("v_lshl_add_u32", "v15", "v1", 2, "v15")
    a("s_lshl_b32", "s42", "s3", 5)
    a("s_add_u32", "s42", "s42", FL_C)
    def fpoll(): a("buffer_load_dword", "v10", "v15", S(SR_FL, 4), "s42", mods="offen sc1")
    fpoll()
    srd(a, 16, 6, 2048 * 4096 * 2, off=WS_CTX)
    srd(a, 20, 10, SZ["wo"])
    srd(a, 24, 4, SZ["x"])
    srd(a, 60, 8, SZ["out"])
    srd(a, 44, 6, 2048 * 4, off=WS_G)
    VC = 4; VWs = 5; WA = [6, 7, 8, 9]
    a("s_lshl_b32", "s28", "s3", 15)
    a("s_lshl_b32", "s29", "s14", 17)
    a("s_add_u32", "s29", "s29", "s28")
    a("v_add_u32", V(VC), "s29", "v3")
    a("v_lshrrev_b32", V(VWs), 3, "v2")
    a("s_lshl_b32", "s28", "s3", 10)
    a("v_add_u32", V(VWs), "s28", V(VWs))
    a("v_mul_u32_u24", V(VWs), 1280, V(VWs))
    a("v_lshrrev_b32", "v1", 4, "v2"); a("v_lshlrev_b32", "v1", 1, "v1")
    a("v_and_b32", "v11", 7, "v2"); a("v_xor_b32", "v1", "v1", "v11")
    a("v_lshl_add_u32", V(VWs), "v1", 4, V(VWs))
    a("s_lshl_b32", "s28", "s15", 7)
    a("v_add_u32", V(VWs), "s28", V(VWs))
    a("s_lshl_b32", "s59", "s3", 14)
    a("s_add_u32", "s59", "s59", "s58")
    a("v_lshrrev_b32", "v1", 2, "v2")
    a("v_lshlrev_b32", "v11", 7, "v1")
    a("v_and_b32", V(WA[0]), 3, "v2")
    a("v_lshl_add_u32", "v11", V(WA[0]), 3, "v11")
    a("v_add_u32", "v11", "s59", "v11")
    a("v_bfe_u32", "v1", "v2", 3, 2)
    for mt in range(4):
        a("v_xor_b32", V(WA[mt]), mt, "v1")
        a("v_lshl_add_u32", V(WA[mt]), V(WA[mt]), 5, "v11")
    vt, vm, vx, vy, vf = 240, 241, 242, 243, 244
    a("v_and_b32", V(vt), 15, "v2")
    a("s_lshl_b32", "s28", "s14", 4)
    a("v_add_u32", V(vt), "s28", V(vt))
    a("v_lshrrev_b32", V(vm), 4, "v2")
    a("v_lshlrev_b32", V(vm), 2, V(vm))
    a("s_lshl_b32", "s28", "s15", 6)
    a("s_lshl_b32", "s29", "s3", 4)
    a("s_add_u32", "s28", "s28", "s29")
    a("v_add_u32", V(vm), "s28", V(vm))
    a("v_mul_u32_u24", V(vx), 1280, V(vt))
    a("v_lshl_add_u32", V(vx), V(vm), 1, V(vx))
    a("v_lshlrev_b32", V(vy), 12, V(vm))
    a("v_lshl_add_u32", V(vy), V(vt), 1, V(vy))
    a("v_lshlrev_b32", V(vt), 2, V(vt))
    a("s_lshl_b32", "s28", "s28", 2)
    a("s_add_u32", "s28", "s28", FL_Y2)
    a("v_lshlrev_b32", V(vf), 2, "v2")
    a("v_add_u32", V(vf), "s28", V(vf))
    a("s_bfe_u32", "s28", "s13", "0x80008")
    a("s_add_u32", "s28", "s28", "s14")
    a("s_lshl_b32", "s28", "s28", 1)
    a("s_sub_u32", "s28", "s28", 1)
    a("s_lshl_b32", "s29", "s14", 1)
    a("s_sub_u32", "s29", "s29", 16)
    a("v_add_u32", "v1", "s29", "v2")
    a("v_min_u32", "v1", "s28", "v1")
    a("v_lshlrev_b32", "v1", 2, "v1")
    a("v_add_u32", "v1", FL_G, "v1")
    a("v_cmp_gt_u32", "vcc", 16, "v2")
    a("v_cndmask_b32", V(vf), "v1", V(vf), "vcc")
    def wdma(step_imm, slot):
        L = []
        for i in range(4):
            def f(i=i):
                if i == 0: a("s_add_u32", "m0", "s59", slot * 4096)
                a("s_add_u32", "s35", "s33", step_imm * 32 * 1280 + i * 8 * 1280 - i * 1024)
                a("buffer_load_dwordx4", V(VWs), S(20, 4), "s35", mods=f"offen offset:{i*1024} lds")
            L.append(f)
        return L
    a("s_mov_b32", "s33", 0)
    a("s_mov_b32", "s30", 0)
    ldswait(8)
    for u in range(4):
        for f in wdma(u, u): f()
    a("s_waitcnt", "vmcnt(16)")
    sig("v13", "s41")
    ldsinc(4)
    st_.stamp()
    a("s_mov_b32", "s31", 0)
    cp = a.label(a.newlabel("p4_cpoll")); cok = a.newlabel("p4_cok")
    a("v_cmp_ne_u32", "vcc", "v10", "v13")
    a("s_cbranch_vccz", cok)
    a("s_sleep", 6)
    fpoll()
    a("s_waitcnt", "vmcnt(0)")
    a("s_add_u32", "s31", "s31", 1)
    a("s_cmp_lt_u32", "s31", 1 << 19)
    a("s_cbranch_scc1", cp)
    a.label(cok)
    ldswait(4)
    st_.stamp()
    fin = a.newlabel("p4_fin")
    l6 = a.newlabel("p4_nq6")
    a("s_bitcmp1_b32", "s13", 9)
    a("s_cbranch_scc1", l6)
    n_st = st_.n
    for nq in (5, 6):
        if nq == 6: a.label(l6)
        st_.n = n_st
        ACC = 16; CF = ACC + 16 * nq; WF = CF + 16 * nq
        assert WF + 32 <= 240
        cf = lambda u, qt: V(CF + 4 * (u * nq + qt), 4)
        wf = lambda s, mt: V(WF + 16 * s + 4 * mt, 4)
        accn = lambda mt, qt: ACC + 4 * (mt * nq + qt)
        for qt in range(nq): a("s_mov_b32", S(60 - 8 + 0) if False else S(96 + qt if qt < 4 else 50 + qt), qt * 131072)
        SO = [96, 97, 98, 99, 54, 55]
        def ldc(u, qt): a("buffer_load_dwordx4", cf(u, qt), V(VC), S(16, 4), S(SO[qt]), mods=f"offen offset:{u*1024} sc1")
        q = LdsQ(a)
        def rdw(u, mt):
            for t in range(2):
                q.issue("ds_read_b64_tr_b16", V(WF + 16 * (u % 2) + 4 * mt + 2 * t, 2), V(WA[mt]), mods=f"offset:{u*4096 + t*2048}")
        for u in range(4):
            for qt in range(nq): ldc(u, qt)
        a("s_waitcnt", f"vmcnt({4*nq})")
        for mt in range(4): rdw(0, mt)
        a("s_mov_b32", "s31", 0)
        NO = nq + 4
        XE = CF; YE = CF + 2 * nq; GE = CF + 6 * nq
        slow = a.newlabel("p4_slowpoll"); back = a.newlabel("p4_pollok")
        qent = list(q.q)
        for mode in ("first", "loop", "last"):
            if mode == "loop": loop = a.label(a.newlabel("p4_loop"))
            if mode != "last":
                a("v_add_u32", V(VC), 4096, V(VC))
                a("s_add_u32", "s33", "s33", 128 * 1280)
            else:
                a("buffer_load_dword", "v10", V(vf), S(SR_FL, 4), 0, mods="offen sc1")
            assert q.q == qent
            for u in range(4):
                if mode == "first": n = (3 - u) * nq + u * NO if u < 3 else nq + 2 * NO
                elif mode == "loop": n = nq + 2 * NO
                else: n = [nq + 2 * NO + 1, nq + NO + 1, nq + 1, 0][u]
                a("s_waitcnt", f"vmcnt({n})")
                if mode == "last" and u == 3:
                    a("v_cmp_ne_u32", "vcc", "v10", "v13")
                    a("s_cbranch_vccnz", slow)
                    a.label(back)
                    for qt in range(nq):
                        a("s_mov_b32", "s28", qt * 16 * 1280)
                        a("buffer_load_dwordx2", V(XE + 2 * qt, 2), V(vx), S(24, 4), "s28", mods="offen")
                        a("buffer_load_dword", V(GE + qt), V(vt), S(44, 4), 0, mods=f"offen offset:{qt*64} sc1")
                    for r_ in range(4):
                        a("s_mov_b32", "s28", r_ * 4096)
                        for qt in range(nq):
                            a("buffer_load_ushort", V(YE + 4 * qt + r_), V(vy), S(36, 4), "s28", mods=f"offen offset:{qt*32} sc1")
                q.drain()
                dm = wdma(u, u) if mode != "last" else []
                k = 0
                for mt in range(4):
                    for qt in range(nq):
                        d = V(accn(mt, qt), 4)
                        a(MF16, d, wf(u % 2, mt), cf(u, qt), "0" if (mode == "first" and u == 0) else d)
                        if qt == 0 and not (mode == "last" and u == 3): rdw((u + 1) % 4, mt)
                        if mt < 3 and qt in (2, 4) and dm: dm.pop(0)()
                        if mt == 3 and mode != "last": ldc(u, qt)
                assert not dm
            if mode == "loop":
                a("s_add_u32", "s31", "s31", 1)
                a("s_cmp_lt_u32", "s31", 6)
                a("s_cbranch_scc1", loop)
        st_.stamp()
        a("s_barrier")
        RW = 4 * nq * 1024
        a("s_mul_i32", "s28", "s3", RW)
        a("v_add_u32", "v8", "s28", "v3")
        for mt in range(4):
            for qt in range(nq):
                a("ds_write_b128", "v8", V(accn(mt, qt), 4), mods=f"offset:{(mt*nq+qt)*1024}")
        T = WF; G1 = WF + 16; B = CF + 8 * nq
        a("s_waitcnt", "vmcnt(0)")
        for qt in range(nq):
            t = B + 4 * qt
            a("v_sub_f32", V(G1), 1.0, V(GE + qt))
            rnd2(a, T, G1, T + 1)
            unpack(a, XE + 2 * qt, t, t + 1); unpack(a, XE + 2 * qt + 1, t + 2, t + 3)
            for r_ in range(4):
                y = YE + 4 * qt + r_
                a("v_lshlrev_b32", V(y), 16, V(y))
                a("v_mul_f32", V(t + r_), V(t + r_), V(y))
            rnd2(a, T, t, t + 1); rnd2(a, T + 1, t + 2, t + 3)
            for r_ in range(4): a("v_mul_f32", V(t + r_), V(t + r_), V(G1))
            rnd2(a, T, t, t + 1); rnd2(a, T + 1, t + 2, t + 3)
        a("s_waitcnt", "lgkmcnt(0)")
        a("s_barrier")
        a("s_mul_i32", "s28", "s3", nq * 1024)
        a("v_add_u32", "v8", "s28", "v3")
        a("v_add_u32", "v9", 2 * RW, "v8")
        R = ACC
        for qt in range(nq):
            for sw in range(4):
                a("ds_read_b128", V(R + 4 * (sw * nq + qt), 4), "v8" if sw < 2 else "v9", mods=f"offset:{(sw%2)*RW + qt*1024}")
        for qt in range(nq):
            a("s_waitcnt", f"lgkmcnt({min(15, 4*(nq-1-qt))})")
            s = R + 4 * qt; t = B + 4 * qt; o = T + 2 + 2 * qt; S_ = 4 * nq
            for r_ in range(4):
                a("v_add_f32", V(s + r_), V(s + r_), V(s + S_ + r_))
                a("v_add_f32", V(s + 2 * S_ + r_), V(s + 2 * S_ + r_), V(s + 3 * S_ + r_))
                a("v_add_f32", V(s + r_), V(s + r_), V(s + 2 * S_ + r_))
            rnd2(a, T, s, s + 1); rnd2(a, T + 1, s + 2, s + 3)
            for r_ in range(4): a("v_mul_f32", V(s + r_), V(s + r_), V(GE + qt))
            rnd2(a, T, s, s + 1); rnd2(a, T + 1, s + 2, s + 3)
            for r_ in range(4): a("v_add_f32", V(s + r_), V(s + r_), V(t + r_))
            a("v_cvt_pk_bf16_f32", V(o), V(s), V(s + 1))
            a("v_cvt_pk_bf16_f32", V(o + 1), V(s + 2), V(s + 3))
            a("s_mov_b32", "s28", qt * 16 * 1280)
            a("buffer_store_dwordx2", V(o, 2), V(vx), S(60, 4), "s28", mods="offen")
        a("s_branch", fin)
        a.label(slow)
        a("s_mov_b32", "s31", 0)
        pl = a.label(a.newlabel("p4_pl"))
        a("s_sleep", 8)
        a("buffer_load_dword", "v10", V(vf), S(SR_FL, 4), 0, mods="offen sc1")
        a("s_waitcnt", "vmcnt(0)")
        a("v_cmp_ne_u32", "vcc", "v10", "v13")
        a("s_cbranch_vccz", back)
        a("s_add_u32", "s31", "s31", 1)
        a("s_cmp_lt_u32", "s31", 1 << 19)
        a("s_cbranch_scc1", pl)
        a("s_branch", back)
    n0 = st_.n
    a.label(conv)
    sig("v13", "s41")
    a("v_mov_b32", "v250", "v13")
    a("s_sub_u32", "s28", "s3", 4)
    a("s_lshl_b32", "s56", "s28", 8)
    a("s_add_u32", "s56", "s56", "s2")
    a("s_cmp_ge_u32", "s56", 640); a("s_cbranch_scc1", done)
    a("s_mul_i32", "s28", "s28", CONV_LDS)
    a("s_add_u32", "s57", "s57", "s28")
    srd(a, 24, 6, 640 * 4096, off=WS_UT)
    srd(a, 16, 48, SZ["ssmk"]); srd(a, 20, 50, SZ["ssmd"])
    def wait_ut():
        a("s_lshr_b32", "s28", "s56", 6)
        a("s_lshl_b32", "s28", "s28", 8)
        a("s_add_u32", "s28", "s28", FL_P)
        a("v_lshlrev_b32", "v252", 2, "v2")
        a("s_mov_b32", "s31", 0)
        up = a.label(a.newlabel("p4_upoll")); uok = a.newlabel("p4_uok")
        a("buffer_load_dword", "v253", "v252", S(SR_FL, 4), "s28", mods="offen sc1")
        a("s_waitcnt", "vmcnt(0)")
        a("v_cmp_ne_u32", "vcc", "v253", "v250")
        a("s_cbranch_vccz", uok)
        a("s_sleep", 16)
        a("s_add_u32", "s31", "s31", 1)
        a("s_cmp_lt_u32", "s31", 1 << 18)
        a("s_cbranch_scc1", up)
        a.label(uok)
    def cwait():
        st_.stamp()
        if "cw" in abl and not getattr(cwait, "done", False):
            cwait.done = True
            a("v_mov_b32", "v252", EPL)
            a("s_mov_b32", "s31", 0)
            gw = a.label(a.newlabel("p4_cw")); gok = a.newlabel("p4_cwok")
            a("ds_read_b32", "v253", "v252", mods="offset:8")
            a("s_waitcnt", "lgkmcnt(0)")
            a("v_readfirstlane_b32", "s28", "v253", ann={"val": lambda c: 4})
            a("s_cmp_ge_u32", "s28", 4)
            a("s_cbranch_scc1", gok)
            a("s_sleep", 4)
            a("s_add_u32", "s31", "s31", 1)
            a("s_cmp_lt_u32", "s31", 1 << 19)
            a("s_cbranch_scc1", gw)
            a.label(gok)
    st_.n = n0 - 3
    st_.stamp()
    conv_wave(a, "s56", "s57", 2, 16, 24, 20, 36, 4, 60, sfx=" sc1", mid=cwait, before_ut=wait_ut)
    a("s_waitcnt", "vmcnt(0)")
    a("s_lshl_b32", "s28", "s56", 2)
    a("s_add_u32", "s28", "s28", FL_Y2)
    a("v_mov_b32", "v12", 0)
    sig("v250", "s28")
    a.label(fin)

def table_text(abl=()):
    T = TAB
    if "sametile" in abl: T = [(5 * (w % 8), 5, w % 8) for w in range(256)]
    return ".p2align 2\np4_table:\n" + "".join(f".long {pack(t)}\n" for t in T)
```

```python
from common import *
import struct, math
def f32bits(x): return struct.unpack("<I", struct.pack("<f", x))[0]

def rnd2(a, pk, x0, x1):
    a("v_cvt_pk_bf16_f32", V(pk), V(x0), V(x1))
    a("v_lshlrev_b32", V(x0), 16, V(pk))
    a("v_and_b32", V(x1), "0xffff0000", V(pk))

def unpack(a, src, lo, hi):
    a("v_lshlrev_b32", V(lo), 16, V(src))
    a("v_and_b32", V(hi), "0xffff0000", V(src))

def prep_wof(a, s_task, vLane, SR_WO, SR_WOF, vb, st):
    a("s_lshr_b32", S(st), s_task, 3)
    a("s_and_b32", S(st + 1), s_task, 7)
    a("s_mul_i32", S(st + 2), S(st), 32 * 1280)
    a("s_mul_i32", S(st + 3), S(st + 1), 160)
    a("s_add_u32", S(st + 2), S(st + 2), S(st + 3))
    a("v_lshrrev_b32", V(vb), 4, V(vLane))
    a("v_mul_u32_u24", V(vb), 4 * 1280, V(vb))
    a("v_and_b32", V(vb + 1), 15, V(vLane))
    a("v_lshl_add_u32", V(vb), V(vb + 1), 1, V(vb))
    a("v_add_u32", V(vb + 1), 16 * 1280, V(vb))
    D = vb + 4
    for mt in range(5):
        for e in range(8):
            a("buffer_load_ushort", V(D + 20 * (e % 2) + 4 * mt + e // 2), V(vb + (e // 4)), S(SR_WO, 4), S(st + 2), mods=f"offen offset:{(e%4)*1280 + mt*32}")
    a("s_mul_i32", S(st + 1), S(st + 1), 5 * 131072)
    a("s_lshl_b32", S(st), S(st), 10)
    a("s_add_u32", S(st), S(st), S(st + 1))
    a("v_lshlrev_b32", V(vb + 2), 4, V(vLane))
    for mt in range(5):
        a("s_waitcnt", f"vmcnt({(4-mt)*8 + mt})")
        for k in range(4): a("v_lshl_or_b32", V(D + 4 * mt + k), V(D + 20 + 4 * mt + k), 16, V(D + 4 * mt + k))
        a("buffer_store_dwordx4", V(D + 4 * mt, 4), V(vb + 2), S(SR_WOF, 4), S(st), mods="offen")
        a("s_add_u32", S(st), S(st), 131072)

def prep_gate(a, s_wg, vLane, SR_X, SR_GW, SR_G, vb, st):
    a("v_lshrrev_b32", V(vb), 3, V(vLane))
    a("s_lshl_b32", S(st), s_wg, 3)
    a("v_add_u32", V(vb), S(st), V(vb))
    a("v_mul_u32_u24", V(vb + 1), 1280, V(vb))
    a("v_and_b32", V(vb + 2), 7, V(vLane))
    a("v_lshlrev_b32", V(vb + 2), 4, V(vb + 2))
    a("v_add_u32", V(vb + 1), V(vb + 1), V(vb + 2))
    XR = vb + 8; GR = XR + 40; T = vb + 3
    for i in range(10):
        a("buffer_load_dwordx4", V(XR + 4 * i, 4), V(vb + 1), S(SR_X, 4), 0, mods=f"offen offset:{i*128}")
        a("buffer_load_dwordx4", V(GR + 4 * i, 4), V(vb + 2), S(SR_GW, 4), 0, mods=f"offen offset:{i*128}")
    acc = vb + 2
    first = True
    for i in range(10):
        a("s_waitcnt", f"vmcnt({18 - 2*i})")
        for k in range(4):
            x = XR + 4 * i + k; g = GR + 4 * i + k
            unpack(a, x, T, T + 1); unpack(a, g, T + 2, T + 3)
            a("v_mul_f32", V(T), V(T), V(T + 2)); a("v_mul_f32", V(T + 1), V(T + 1), V(T + 3))
            rnd2(a, T + 2, T, T + 1)
            if first: a("v_add_f32", V(acc), V(T), V(T + 1)); first = False
            else:
                a("v_add_f32", V(acc), V(acc), V(T)); a("v_add_f32", V(acc), V(acc), V(T + 1))
    for off in (0x041F, 0x081F, 0x101F):
        a("ds_swizzle_b32", V(T), V(acc), mods=f"offset:{hex(off)}")
        a("s_waitcnt", "lgkmcnt(0)")
        a("v_add_f32", V(acc), V(acc), V(T))
    rnd2(a, T, acc, T + 1)
    a("v_mul_f32", V(acc), hex(f32bits(-math.log2(math.e))), V(acc))
    a("v_exp_f32", V(acc), V(acc))
    a("v_add_f32", V(acc), 1.0, V(acc))
    a("v_rcp_f32", V(acc), V(acc))
    rnd2(a, T, acc, T + 1)
    a("v_lshlrev_b32", V(vb), 2, V(vb))
    a("buffer_store_dword", V(acc), V(vb), S(SR_G, 4), 0, mods="offen")

def prep_ut(a, s_task, vLane, SR_K, SR_V, SR_SH, SR_UT, vb, st):
    a("s_mul_i32", S(st), s_task, 6554)
    a("s_lshr_b32", S(st), S(st), 16)
    a("s_mul_i32", S(st + 1), S(st), 10)
    a("s_sub_u32", S(st + 1), s_task, S(st + 1))
    a("v_lshrrev_b32", V(vb), 3, V(vLane))
    a("v_lshlrev_b32", V(vb), 2, V(vb))
    a("s_lshl_b32", S(st + 2), S(st), 5)
    a("v_add_u32", V(vb), S(st + 2), V(vb))
    a("v_and_b32", V(vb + 1), 7, V(vLane))
    a("v_lshlrev_b32", V(vb + 1), 3, V(vb + 1))
    a("s_lshl_b32", S(st + 2), S(st + 1), 6)
    a("v_add_u32", V(vb + 1), S(st + 2), V(vb + 1))
    a("v_mul_u32_u24", V(vb + 2), 1280, V(vb))
    a("v_lshl_add_u32", V(vb + 2), V(vb + 1), 1, V(vb + 2))
    a("v_subrev_u32", V(vb + 3), 3 * 1280, V(vb + 2))
    a("v_cmp_eq_u32", "vcc", 0, V(vb))
    a("v_mov_b32", V(vb + 4), "0x7f000000")
    a("v_cndmask_b32", V(vb + 3), V(vb + 3), V(vb + 4), "vcc")
    a("v_lshlrev_b32", V(vb + 4), 3, V(vb + 1))
    KR = vb + 8; VR = KR + 28; SH = VR + 16; KF = SH + 16; SF = KF + 14; W = SF + 8; OUT = W + 20
    for i in range(3): a("buffer_load_dwordx4", V(KR + 4 * i, 4), V(vb + 3), S(SR_K, 4), 0, mods=f"offen offset:{i*1280}")
    for i in range(4): a("buffer_load_dwordx4", V(KR + 12 + 4 * i, 4), V(vb + 2), S(SR_K, 4), 0, mods=f"offen offset:{i*1280}")
    for i in range(4): a("buffer_load_dwordx4", V(VR + 4 * i, 4), V(vb + 2), S(SR_V, 4), 0, mods=f"offen offset:{i*1280}")
    for i in range(4): a("buffer_load_dwordx4", V(SH + 4 * i, 4), V(vb + 4), S(SR_SH, 4), 0, mods=f"offen offset:{i*16}")
    a("v_lshlrev_b32", V(vb + 5), 12, V(vb + 1))
    a("v_lshlrev_b32", V(vb + 6), 1, V(vb))
    a("v_sub_u32", V(vb + 5), V(vb + 5), V(vb + 6))
    a("v_add_u32", V(vb + 5), 4088, V(vb + 5))
    a("s_waitcnt", "vmcnt(0)")
    a("s_mov_b32", S(st), 0)
    for cp in range(4):
        for i in range(7): unpack(a, KR + 4 * i + cp, KF + i, KF + 7 + i)
        for c in range(2):
            unpack(a, SH + 2 * (2 * cp + c), SF + 4 * c, SF + 4 * c + 1)
            unpack(a, SH + 2 * (2 * cp + c) + 1, SF + 4 * c + 2, SF + 4 * c + 3)
        for c in range(2):
            kf = KF + 7 * c; sf = SF + 4 * c
            A = W; P = W + 4; pk = W + 8
            for tap in range(4):
                dst = A if tap == 0 else P
                for t in range(4): a("v_mul_f32", V(dst + t), V(kf + t + tap), V(sf + 3 - tap))
                rnd2(a, pk, dst, dst + 1); rnd2(a, pk + 1, dst + 2, dst + 3)
                if tap:
                    for t in range(4): a("v_add_f32", V(A + t), V(A + t), V(P + t))
                    rnd2(a, pk, A, A + 1); rnd2(a, pk + 1, A + 2, A + 3)
            for t in range(4):
                if c == 0: a("v_lshlrev_b32", V(P + t), 16, V(VR + 4 * t + cp))
                else: a("v_and_b32", V(P + t), "0xffff0000", V(VR + 4 * t + cp))
                a("v_mul_f32", V(A + t), V(A + t), V(P + t))
            o = OUT + 2 * ((2 * cp + c) % 4)
            a("v_cvt_pk_bf16_f32", V(o), V(A + 3), V(A + 2))
            a("v_cvt_pk_bf16_f32", V(o + 1), V(A + 1), V(A))
            a("buffer_store_dwordx2", V(o, 2), V(vb + 5), S(SR_UT, 4), S(st), mods="offen")
            a("s_add_u32", S(st), S(st), 4096)
    return OUT + 8

def gen_prep(a, name="prep_kernel", abl=()):
    kernel_begin(a, name)
    done = a.newlabel("prep_done")
    a("s_cmp_ge_u32", "s2", 256); a("s_cbranch_scc1", done)
    a("s_load_dwordx2", S(4, 2), S(0, 2), KA["x"])
    a("s_load_dwordx2", S(6, 2), S(0, 2), KA["ws"])
    a("s_load_dwordx2", S(8, 2), S(0, 2), KA["wo"])
    a("s_load_dwordx4", S(12, 4), S(0, 2), KA["bk"])
    a("s_load_dwordx2", S(10, 2), S(0, 2), KA["shk"])
    a("s_load_dwordx2", S(16, 2), S(0, 2), KA["gw"])
    a("v_lshrrev_b32", "v1", 6, "v0")
    a("v_and_b32", "v2", 63, "v0")
    a("v_readfirstlane_b32", "s3", "v1", ann={"val": lambda c: c["wave"]})
    a("s_waitcnt", "lgkmcnt(0)")
    srd(a, 20, 4, SZ["x"]); srd(a, 24, 8, SZ["wo"]); srd(a, 28, 12, SZ["bk"]); srd(a, 32, 14, SZ["bv"])
    srd(a, 36, 10, SZ["shk"]); srd(a, 40, 16, SZ["gw"])
    srd(a, 44, 6, 4096 * 640 * 2, off=WS_WOF); srd(a, 48, 6, 640 * 4096, off=WS_UT); srd(a, 52, 6, 2048 * 4, off=WS_G)
    a("s_lshl_b32", "s56", "s2", 2)
    a("s_add_u32", "s56", "s56", "s3")
    prep_wof(a, "s56", 2, 24, 44, 4, 60)
    g = a.newlabel("prep_gate")
    a("s_cmp_eq_u32", "s3", 3); a("s_cbranch_scc1", g)
    a("s_lshl_b32", "s56", "s3", 8)
    a("s_add_u32", "s56", "s56", "s2")
    a("s_cmp_ge_u32", "s56", 640); a("s_cbranch_scc1", done)
    prep_ut(a, "s56", 2, 28, 32, 36, 48, 4, 60)
    a("s_endpgm")
    a.label(g)
    prep_gate(a, "s2", 2, 20, 40, 52, 4, 60)
    a.label(done)
    a("s_endpgm")
    return dict(name=name, vgpr=128, grid=256, block=256, lds=0, waves=4)

CONV_LDS = 13056
def conv_wave(a, s_ch, s_lds, vLane, SR_H, SR_UT, SR_D, SR_Y, vb, st, sfx="", after_loads=None, mid=None, before_ut=None):
    H0 = 64; H1 = 4288 - 64 + 4; UB = 8384; ZB = 12480
    assert ((H1 - H0) // 4) % 32 == 0 or True
    a("v_lshlrev_b32", V(vb), 4, V(vLane))
    a("s_lshl_b32", S(st), s_ch, 12)
    a("s_add_u32", "m0", s_lds, H0)
    for i in range(4): a("buffer_load_dwordx4", V(vb), S(SR_H, 4), S(st), mods=f"offen offset:{i*1024} lds")
    a("s_lshl_b32", S(st + 1), s_ch, 1)
    a("v_mov_b32", V(vb + 7), S(st + 1))
    a("buffer_load_ushort", V(vb + 6), V(vb + 7), S(SR_D, 4), 0, mods="offen")
    if before_ut: before_ut()
    a("s_add_u32", "m0", s_lds, UB)
    for i in range(4): a("buffer_load_dwordx4", V(vb), S(SR_UT, 4), S(st), mods=f"offen offset:{i*1024}{sfx} lds")
    if after_loads: after_loads()
    a("v_mov_b32", V(vb + 2), 0); a("v_mov_b32", V(vb + 3), 0)
    a("v_lshlrev_b32", V(vb + 1), 3, V(vLane))
    a("v_add_u32", V(vb + 1), s_lds, V(vb + 1))
    a("ds_write_b64", V(vb + 1), V(vb + 2, 2), mods=f"offset:{ZB}")
    a("v_and_b32", V(vb + 4), 15, V(vLane))
    a("v_lshlrev_b32", V(vb + 5), 2, V(vb + 4))
    a("v_add_u32", V(vb + 5), s_lds, V(vb + 5))
    a("ds_write_b32", V(vb + 5), V(vb + 2))
    a("ds_write_b32", V(vb + 5), V(vb + 2), mods=f"offset:{H1 - 4 - 64}")
    vB = vb + 2; vU = vb + 3; vO = vb + 5; vA = [vb + 8, vb + 9, vb + 10, vb + 11]
    a("v_lshrrev_b32", V(vb + 7), 4, V(vLane))
    a("v_add_u32", V(vb + 1), 1, V(vb + 4))
    a("v_and_b32", V(vA[1]), 1, V(vb + 1))
    a("v_sub_u32", V(vA[0]), V(vb + 4), V(vA[1]))
    a("v_lshlrev_b32", V(vA[0]), 1, V(vA[0]))
    a("v_lshl_add_u32", V(vA[0]), V(vb + 7), 4, V(vA[0]))
    a("v_mul_u32_u24", V(vA[1]), H1 - H0, V(vA[1]))
    a("s_add_u32", S(st + 1), s_lds, H0 - 30)
    a("v_add3_u32", V(vA[0]), V(vA[0]), V(vA[1]), S(st + 1))
    for k in range(1, 4): a("v_add_u32", V(vA[k]), 1024 * k, V(vA[0]))
    a("v_lshlrev_b32", V(vB), 4, V(vb + 7))
    a("v_lshlrev_b32", V(vO), 5, V(vb + 4))
    a("v_sub_u32", V(vB), V(vB), V(vO))
    a("s_add_u32", S(st + 1), s_lds, UB + 4064 - 3584)
    a("v_add_u32", V(vB), S(st + 1), V(vB))
    a("v_lshl_add_u32", V(vO), V(vb + 7), 3, V(vO))
    a("s_add_u32", S(st + 1), s_lds, UB + 4088 - 3584)
    a("v_sub_u32", V(vU), S(st + 1), V(vO))
    ACC = vb + 16; FA = [ACC + 32, ACC + 96]; FB = [ACC + 64, ACC + 128]
    a("s_waitcnt", "vmcnt(0)")
    a("v_add_u32", V(vb + 1), s_lds, V(vb))
    a("s_waitcnt", "lgkmcnt(0)")
    for i in range(4):
        a("ds_read_b128", V(FA[0] + 8 * i + 4, 4), V(vb + 1), mods=f"offset:{H0 + 1024*i}")
        a("ds_read_b32", V(FA[0] + 8 * i + 3), V(vb + 1), mods=f"offset:{H0 + 1024*i - 4}")
    for i in range(4):
        a("s_waitcnt", f"lgkmcnt({6 - 2*i + i})")
        for k in range(4): a("v_alignbit_b32", V(FB[0] + 4 * i + k), V(FA[0] + 8 * i + 4 + k), V(FA[0] + 8 * i + 3 + k), 16)
        a("ds_write_b128", V(vb + 1), V(FB[0] + 4 * i, 4), mods=f"offset:{H1 - 4 + 1024*i}")
    a("s_waitcnt", "lgkmcnt(0)")
    if mid: mid()
    q = LdsQ(a)
    def reads(s, rr):
        L = []
        for k in range(8):
            L.append(lambda k=k: q.issue("ds_read_b128", V(FB[s] + 4 * k, 4), V(vB), mods=f"offset:{64*rr + 512*(7-k)}"))
            def fa(k=k):
                o = 16 * rr + 128 * (k % 2)
                q.issue("ds_read2_b32", V(FA[s] + 4 * k, 2), V(vA[k // 2]), mods=f"offset0:{o} offset1:{o+1}")
                q.issue("ds_read2_b32", V(FA[s] + 4 * k + 2, 2), V(vA[k // 2]), mods=f"offset0:{o+2} offset1:{o+3}")
            L.append(fa)
        return L
    for f in reads(0, 0): f()
    written = set()
    for rr in range(8):
        s = rr & 1
        nxt = reads(s ^ 1, rr + 1) if rr < 7 else []
        pairs = sorted([(aa, c) for aa in range(8) for c in range(8 - aa)], key=lambda x: (max(x), x[0] + x[1]))
        for n, (aa, c) in enumerate(pairs):
            q.need(V(FA[s] + 4 * aa, 4), V(FB[s] + 4 * c, 4))
            d = V(ACC + 4 * (aa + c), 4)
            a(MF16, d, V(FA[s] + 4 * aa, 4), V(FB[s] + 4 * c, 4), d if (aa + c) in written else "0")
            written.add(aa + c)
            if n % 2 == 1 and nxt: nxt.pop(0)()
        assert not nxt
    U = FA[0]; T = FB[0]
    for cb in range(8): q.issue("ds_read_b64", V(U + 2 * cb, 2), V(vU), mods=f"offset:{512*(7-cb)}")
    a("v_lshlrev_b32", V(vb + 6), 16, V(vb + 6))
    a("v_add_u32", V(vO), s_lds, V(vO))
    q.drain()
    if mid: mid()
    for cb in range(8):
        y = ACC + 4 * cb; t = T + 8 * (cb % 2)
        rnd2(a, t + 4, y, y + 1); rnd2(a, t + 5, y + 2, y + 3)
        unpack(a, U + 2 * cb, t + 3, t + 2)
        unpack(a, U + 2 * cb + 1, t + 1, t)
        for r_ in range(4): a("v_mul_f32", V(t + r_), V(t + r_), V(vb + 6))
        rnd2(a, t + 4, t, t + 1); rnd2(a, t + 5, t + 2, t + 3)
        for r_ in range(4): a("v_add_f32", V(y + r_), V(y + r_), V(t + r_))
        a("v_cvt_pk_bf16_f32", V(t + 6), V(y), V(y + 1))
        a("v_cvt_pk_bf16_f32", V(t + 7), V(y + 2), V(y + 3))
        a("ds_write_b64", V(vO), V(t + 6, 2), mods=f"offset:{512*cb}")
    a("v_add_u32", V(vb + 1), s_lds, V(vb))
    a("s_waitcnt", "lgkmcnt(0)")
    for i in range(4): a("ds_read_b128", V(ACC + 4 * i, 4), V(vb + 1), mods=f"offset:{1024*i}")
    for i in range(4):
        a("s_waitcnt", f"lgkmcnt({3-i})")
        a("buffer_store_dwordx4", V(ACC + 4 * i, 4), V(vb), S(SR_Y, 4), S(st), mods=f"offen offset:{1024*i}" + sfx)
    return ACC + 160

def gen_conv(a, name="conv_kernel", abl=()):
    kernel_begin(a, name)
    done = a.newlabel("conv_done")
    a("s_cmp_ge_u32", "s2", 256); a("s_cbranch_scc1", done)
    a("s_load_dwordx4", S(4, 4), S(0, 2), KA["ssmk"])
    a("s_load_dwordx2", S(8, 2), S(0, 2), KA["ws"])
    a("v_lshrrev_b32", "v1", 6, "v0")
    a("v_and_b32", "v2", 63, "v0")
    a("v_readfirstlane_b32", "s3", "v1", ann={"val": lambda c: c["wave"]})
    a("s_waitcnt", "lgkmcnt(0)")
    srd(a, 20, 4, SZ["ssmk"]); srd(a, 24, 6, SZ["ssmd"])
    srd(a, 28, 8, 640 * 4096, off=WS_UT); srd(a, 32, 8, 640 * 4096, off=WS_Y2T)
    a("s_lshl_b32", "s56", "s3", 8)
    a("s_add_u32", "s56", "s56", "s2")
    a("s_cmp_ge_u32", "s56", 640); a("s_cbranch_scc1", done)
    a("s_mul_i32", "s57", "s3", CONV_LDS)
    nv = conv_wave(a, "s56", "s57", 2, 20, 28, 24, 32, 4, 60)
    a.label(done)
    a("s_endpgm")
    return dict(name=name, vgpr=nv, grid=256, block=192, lds=3 * CONV_LDS, waves=3)


class UtTask:
    def __init__(self, a, s_task, vLane, st):
        self.a = a; self.t = s_task; self.l = vLane; self.st = st
        self.vb = 208
        self.KR = 16; self.VR = self.KR + 28; self.SH = self.VR + 16; self.KF = 112; self.SF = self.KF + 14; self.W = self.SF + 8; self.OUT = 160
    def ids(self):
        a, st = self.a, self.st
        a("s_mul_i32", S(st), self.t, 6554); a("s_lshr_b32", S(st), S(st), 16)
        a("s_mul_i32", S(st + 1), S(st), 10); a("s_sub_u32", S(st + 1), self.t, S(st + 1))
    def loads(self, mk, SR, part=None):
        a, st, vb, L = self.a, self.st, self.vb, self.l
        if part in (None, 0):
            self.ids()
            a("v_lshrrev_b32", V(vb), 3, V(L)); a("v_lshlrev_b32", V(vb), 2, V(vb))
            a("s_lshl_b32", S(st + 2), S(st), 5); a("v_add_u32", V(vb), S(st + 2), V(vb))
            a("v_and_b32", V(vb + 1), 7, V(L)); a("v_lshlrev_b32", V(vb + 1), 3, V(vb + 1))
            a("s_lshl_b32", S(st + 2), S(st + 1), 6); a("v_add_u32", V(vb + 1), S(st + 2), V(vb + 1))
            a("v_mul_u32_u24", V(vb + 2), 1280, V(vb))
            a("v_lshl_add_u32", V(vb + 2), V(vb + 1), 1, V(vb + 2))
            a("v_subrev_u32", V(vb + 3), 3 * 1280, V(vb + 2))
            a("v_cmp_eq_u32", "vcc", 0, V(vb))
            a("v_mov_b32", V(vb + 4), "0x7f000000")
            a("v_cndmask_b32", V(vb + 3), V(vb + 3), V(vb + 4), "vcc")
            a("v_lshlrev_b32", V(vb + 4), 3, V(vb + 1))
        KR, VR, SH = self.KR, self.VR, self.SH
        ops = [("bk", 4, KR + 12 + 4 * i, vb + 2, i * 1280) for i in range(4)] + [("bv", 6, VR + 4 * i, vb + 2, i * 1280) for i in range(4)]
        ops += [("bk", 4, KR + 4 * i, vb + 3, i * 1280) for i in range(3)] + [("shk", 10, SH + 4 * i, vb + 4, i * 16) for i in range(4)]
        order = [0, 1, 11, 2, 3, 12, 4, 5, 13, 6, 7, 14, 8, 9, 10]
        ops = [ops[k] for k in order]
        if part is not None: ops = ops[3 * part:3 * part + 3]
        cur = None
        for nm, pair, dst, va, off in ops:
            if nm != cur: mk(SR, pair, nm); cur = nm
            a("buffer_load_dwordx4", V(dst, 4), V(va), S(SR, 4), 0, mods=f"offen offset:{off}")
    def compute(self, SR_UT, s_lds, part=None):
        a, st, vb, L = self.a, self.st, self.vb, self.l
        KR, VR, SH, KF, SF, W, OUT = self.KR, self.VR, self.SH, self.KF, self.SF, self.W, self.OUT
        if part in (None, 0):
            a("v_and_b32", V(vb), 7, V(L)); a("v_mul_u32_u24", V(vb), 528, V(vb))
            a("v_lshrrev_b32", V(vb + 1), 3, V(L)); a("v_lshlrev_b32", V(vb + 1), 3, V(vb + 1))
            a("v_sub_u32", V(vb), V(vb), V(vb + 1))
            a("s_add_u32", S(st + 2), s_lds, 56)
            a("v_add_u32", V(vb), S(st + 2), V(vb))
        for cp in range(4):
            if part is not None and part != cp: continue
            for i in range(7): unpack(a, KR + 4 * i + cp, KF + i, KF + 7 + i)
            for c in range(2):
                unpack(a, SH + 2 * (2 * cp + c), SF + 4 * c, SF + 4 * c + 1)
                unpack(a, SH + 2 * (2 * cp + c) + 1, SF + 4 * c + 2, SF + 4 * c + 3)
            for c in range(2):
                kf = KF + 7 * c; sf = SF + 4 * c
                A = W; P = W + 4
                for tap in range(4):
                    for t in range(4):
                        if tap == 0: a("v_mul_f32", V(A + t), V(kf + t), V(sf + 3))
                        else: a("v_fmac_f32", V(A + t), V(kf + t + tap), V(sf + 3 - tap))
                for t in range(4):
                    if c == 0: a("v_lshlrev_b32", V(P + t), 16, V(VR + 4 * t + cp))
                    else: a("v_and_b32", V(P + t), "0xffff0000", V(VR + 4 * t + cp))
                    a("v_mul_f32", V(A + t), V(A + t), V(P + t))
                o = OUT + 2 * ((2 * cp + c) % 4)
                a("v_cvt_pk_bf16_f32", V(o), V(A + 3), V(A + 2))
                a("v_cvt_pk_bf16_f32", V(o + 1), V(A + 1), V(A))
                a("ds_write_b64", V(vb), V(o, 2), mods=f"offset:{(2*cp+c)*64}")
        if part not in (None, 4): return
        self.ids()
        a("v_lshlrev_b32", V(vb + 1), 4, V(L))
        a("v_lshrrev_b32", V(vb + 2), 5, V(L))
        a("v_lshl_add_u32", V(vb + 1), V(vb + 2), 4, V(vb + 1))
        a("v_add_u32", V(vb + 1), s_lds, V(vb + 1))
        a("v_lshrrev_b32", V(vb + 2), 2, V(L)); a("v_lshlrev_b32", V(vb + 2), 12, V(vb + 2))
        a("v_and_b32", V(vb + 3), 3, V(L)); a("v_lshl_add_u32", V(vb + 2), V(vb + 3), 4, V(vb + 2))
        a("s_lshl_b32", S(st + 2), S(st + 1), 18)
        a("s_lshl_b32", S(st + 3), S(st), 6)
        a("s_sub_u32", S(st + 2), S(st + 2), S(st + 3))
        a("s_add_u32", S(st + 2), S(st + 2), 4096 - 64)
        a("s_waitcnt", "lgkmcnt(0)")
        for i in range(4): a("ds_read_b128", V(KR + 4 * i, 4), V(vb + 1), mods=f"offset:{i*1056}")
        for i in range(4):
            a("s_waitcnt", f"lgkmcnt({3-i})")
            a("buffer_store_dwordx4", V(KR + 4 * i, 4), V(vb + 2), S(SR_UT, 4), S(st + 2), mods="offen sc1")
            a("s_add_u32", S(st + 2), S(st + 2), 65536)

class WofTask:
    def __init__(self, a, s_hT, s_cb, vLane, st, D=16, O=48, vb=208):
        self.a = a; self.hT = s_hT; self.cb = s_cb; self.l = vLane; self.st = st; self.vb = vb; self.D = D; self.O = O
    def loads(self, SR):
        a, st, vb, L, D = self.a, self.st, self.vb, self.l, self.D
        a("s_mul_i32", S(st + 2), self.hT, 32 * 1280)
        a("s_mul_i32", S(st + 3), self.cb, 160)
        a("s_add_u32", S(st + 2), S(st + 2), S(st + 3))
        a("v_lshrrev_b32", V(vb), 4, V(L)); a("v_mul_u32_u24", V(vb), 4 * 1280, V(vb))
        a("v_and_b32", V(vb + 1), 15, V(L)); a("v_min_u32", V(vb + 1), 9, V(vb + 1))
        a("v_lshl_add_u32", V(vb), V(vb + 1), 4, V(vb))
        a("v_add_u32", V(vb + 1), 16 * 1280, V(vb))
        for e in range(8):
            a("buffer_load_dwordx4", V(D + 4 * e, 4), V(vb + (e // 4)), S(SR, 4), S(st + 2), mods=f"offen offset:{(e%4)*1280}")
    def compute(self, SR_WOF, s_lds, part=None):
        a, st, vb, L, D = self.a, self.st, self.vb, self.l, self.D
        if part == 1: return self.stores(SR_WOF)
        a("v_and_b32", V(vb + 1), 15, V(L)); a("v_min_u32", V(vb + 1), 9, V(vb + 1))
        a("v_lshrrev_b32", V(vb + 2), 4, V(L))
        a("v_mad_u32_u24", V(vb), V(vb + 2), 10, V(vb + 1))
        a("v_mul_u32_u24", V(vb), 144, V(vb))
        a("v_add_u32", V(vb), s_lds, V(vb))
        a("v_bfe_u32", V(vb + 1), V(L), 3, 1)
        a("v_mad_u32_u24", V(vb + 2), V(vb + 2), 10, V(vb + 1))
        a("v_mul_u32_u24", V(vb + 2), 144, V(vb + 2))
        a("v_and_b32", V(vb + 1), 7, V(L))
        a("v_lshl_add_u32", V(vb + 2), V(vb + 1), 4, V(vb + 2))
        a("v_add_u32", V(vb + 2), s_lds, V(vb + 2))
        a("v_lshlrev_b32", V(vb + 1), 4, V(L))
        a("s_mov_b32", S(st + 2), "0x05040100"); a("s_mov_b32", S(st + 3), "0x07060302")
        O = self.O
        for k in range(8):
            for e2 in range(4):
                a("v_perm_b32", V(O + 4 * (k % 4) + e2), V(D + 4 * (2 * e2 + 1) + k // 2), V(D + 4 * (2 * e2) + k // 2), S(st + 2 + (k % 2)))
            a("ds_write_b128", V(vb), V(O + 4 * (k % 4), 4), mods=f"offset:{k*16}")
            if k == 3: a("s_waitcnt", "lgkmcnt(0)")
        for mt in range(5): a("ds_read_b128", V(D + 4 * mt, 4), V(vb + 2), mods=f"offset:{mt*288}")
        a("s_waitcnt", "lgkmcnt(0)")
        if part == 0: return
        self.stores(SR_WOF)
    def stores(self, SR_WOF):
        a, st, vb, L, D = self.a, self.st, self.vb, self.l, self.D
        a("s_mul_i32", S(st), self.cb, 5 * 131072)
        a("s_lshl_b32", S(st + 1), self.hT, 10)
        a("s_add_u32", S(st), S(st), S(st + 1))
        for mt in range(5):
            a("buffer_store_dwordx4", V(D + 4 * mt, 4), V(vb + 1), S(SR_WOF, 4), S(st), mods="offen sc1")
            a("s_add_u32", S(st), S(st), 131072)

class GateTask:
    def __init__(self, a, s_task, vLane, st):
        self.a = a; self.t = s_task; self.l = vLane; self.st = st; self.vb = 208; self.XR = 16; self.GR = 56
    def loads(self, SR_X, SR_GW):
        a, vb, st = self.a, self.vb, self.st
        a("v_lshrrev_b32", V(vb), 4, V(self.l))
        a("s_lshl_b32", S(st), self.t, 3)
        a("v_add_u32", V(vb), S(st), V(vb))
        a("v_mul_u32_u24", V(vb + 1), 1280, V(vb))
        a("v_and_b32", V(vb + 2), 15, V(self.l))
        a("v_lshlrev_b32", V(vb + 2), 4, V(vb + 2))
        a("v_add_u32", V(vb + 1), V(vb + 1), V(vb + 2))
        a("s_movk_i32", S(st), 4 * 1280)
        for i in range(5):
            a("buffer_load_dwordx4", V(self.XR + 4 * i, 4), V(vb + 1), S(SR_X, 4), 0, mods=f"offen offset:{i*256}")
            a("buffer_load_dwordx4", V(self.XR + 20 + 4 * i, 4), V(vb + 1), S(SR_X, 4), S(st), mods=f"offen offset:{i*256}")
            a("buffer_load_dwordx4", V(self.GR + 4 * i, 4), V(vb + 2), S(SR_GW, 4), 0, mods=f"offen offset:{i*256}")
    def compute(self, SR_G):
        a, vb = self.a, self.vb
        acc = [vb + 2, vb + 3, vb + 4, vb + 5]; T = vb + 6
        for k in range(4): a("v_mov_b32", V(acc[k]), 0)
        for i in range(20):
            for ps in range(2): a("v_dot2c_f32_bf16", V(acc[2 * ps + i % 2]), V(self.XR + 20 * ps + i), V(self.GR + i))
        a("s_nop", 3)
        a("v_add_f32", V(acc[0]), V(acc[0]), V(acc[1])); a("v_add_f32", V(acc[1]), V(acc[2]), V(acc[3]))
        for off in (0x041F, 0x081F, 0x101F, 0x201F):
            for k in range(2): a("ds_swizzle_b32", V(T + k), V(acc[k]), mods=f"offset:{hex(off)}")
            a("s_waitcnt", "lgkmcnt(0)")
            for k in range(2): a("v_add_f32", V(acc[k]), V(acc[k]), V(T + k))
        rnd2(a, T, acc[0], acc[1])
        for k in range(2):
            a("v_mul_f32", V(acc[k]), hex(f32bits(-math.log2(math.e))), V(acc[k]))
            a("v_exp_f32", V(acc[k]), V(acc[k]))
            a("v_add_f32", V(acc[k]), 1.0, V(acc[k]))
            a("v_rcp_f32", V(acc[k]), V(acc[k]))
        rnd2(a, T, acc[0], acc[1])
        a("v_lshlrev_b32", V(vb), 2, V(vb))
        a("buffer_store_dword", V(acc[0]), V(vb), S(SR_G, 4), 0, mods="offen sc1")
        a("buffer_store_dword", V(acc[1]), V(vb), S(SR_G, 4), 0, mods="offen offset:16 sc1")
```

```python
from common import *
from side import *
import k4
import math

QSCALE = math.log2(math.e) / math.sqrt(128.0)
NEG = 0xff000000
SLOT = 32768
K0OFF = 65536 + 57344
EPT = 119 * 1024
XCH = 131072
R_O = 16; R_Q = 80; R_S = [112, 128]; R_C = 144; R_P = [160, 168]; R_F = 176; R_T = 208; R_L = [216, 218]; R_X = 220
vLANE = 2; vKV = 3; vDMA = 4; vST = 5; vQI = 6
VA = [228, 229, 230, 231]; VB = [232, 233, 234, 235]; VX = [236, 237, 238, 239]; VW = [240, 241, 242, 243]
AL = [244, 245]; BL = [246, 247]; AA = [248, 249]; BA = [250, 251]; VST = [252, 253]; AA2 = [254, 255]
NV = 256
SR_CKV = 16; SR_W = 20; SR_KV = 24; SR_CTX = 44; SR_X = 52; SR_WQ = 56; SR_DBG = 60; SR_FL = 92

def opt(abl, key, default):
    for x in abl:
        if x.startswith(key) and x[len(key):].lstrip("-").isdigit(): return int(x[len(key):])
    return default

def gen_k12(a, name="main_kernel", abl=()):
    if "olddef" not in abl: abl = tuple(abl) + ("rot", "nota", "thinb")
    kernel_begin(a, name)
    done = a.newlabel("k12_done")
    a("s_cmp_ge_u32", "s2", 256)
    a("s_cbranch_scc1", done)
    st_ = Stamps(a, "stamp" in abl)
    st_.allreal = "rt" in abl
    st_.stamp(); st_.stamp(real=True)
    a("s_load_dwordx4", S(4, 4), S(0, 2), KA["x"])
    a("s_load_dwordx4", S(8, 4), S(0, 2), KA["wuk"])
    a("s_load_dwordx2", S(48, 2), S(0, 2), KA["wq"])
    a("s_load_dwordx4", S(36, 4), S(0, 2), KA["dbg"])
    if "nocpf" not in abl:
        CPL = 24
        a("s_getpc_b64", S(28, 2))
        pc0 = a.label(a.newlabel("cpf_pc"))
        a("s_lshr_b32", "s30", "s2", 3)
        a("s_mul_i32", "s30", "s30", CPL)
        a("v_min_u32", "v1", CPL - 1, "v0")
        a("v_add_u32", "v1", "s30", "v1")
        a("v_lshlrev_b32", "v1", 7, "v1")
        a("s_mov_b32", "s30", f"p4_table-{pc0}")
        a("v_min_u32", "v1", "s30", "v1")
        a("global_load_dword", V(227), "v1", S(28, 2))
    a("v_lshrrev_b32", "v1", 6, "v0")
    a("v_and_b32", "v2", 63, "v0")
    a("v_readfirstlane_b32", "s3", "v1", ann={"val": lambda c: c["wave"]})
    a("s_and_b32", "s12", "s2", 7)
    a("s_lshr_b32", "s13", "s2", 3)
    a("s_lshr_b32", "s14", "s13", 3)
    a("s_lshl_b32", "s12", "s12", 2)
    a("s_add_u32", "s12", "s12", "s14")
    a("s_and_b32", "s13", "s13", 7)
    a("s_lshr_b32", "s14", "s3", 2)
    a("s_and_b32", "s15", "s3", 3)
    t0, t1, t2, t3 = 8, 9, 10, 11
    a("v_lshrrev_b32", V(t1), 4, "v2")
    a("v_and_b32", V(t2), 7, "v2")
    a("v_xor_b32", V(t1), V(t1), V(t2))
    a("v_xor_b32", V(t2), 4, V(t1))
    a("v_lshlrev_b32", V(t1), 4, V(t1))
    a("v_lshlrev_b32", V(t2), 4, V(t2))
    a("v_lshrrev_b32", V(t3), 3, "v2")
    a("s_lshl_b32", "s28", "s13", 8)
    a("s_lshl_b32", "s29", "s3", 5)
    a("s_add_u32", "s28", "s28", "s29")
    a("v_add_u32", V(t0), "s28", V(t3))
    a("v_lshlrev_b32", V(t0), 10, V(t0))
    for i in range(4):
        a("v_add3_u32", V(VA[i]), V(t0), V(t1 if i % 2 == 0 else t2), 0)
        if i: a("v_add_u32", V(VA[i]), i * 8192 - i * 1024, V(VA[i]))
    w0, w1 = 12, 13
    a("v_bfe_u32", V(t0), "v2", 2, 2)
    a("v_lshlrev_b32", V(t0), 13, V(t0))
    a("v_lshrrev_b32", V(w0), 4, "v2")
    a("v_lshl_add_u32", V(t0), V(w0), 6, V(t0))
    a("s_lshl_b32", "s28", "s12", 8)
    a("v_add_u32", V(t0), "s28", V(t0))
    a("v_and_b32", V(w0), 3, "v2")
    a("v_xor_b32", V(w1), 2, V(w0))
    a("v_lshl_add_u32", V(w0), V(w0), 4, V(t0))
    a("v_lshl_add_u32", V(w1), V(w1), 4, V(t0))
    a("s_lshl_b32", "s28", "s15", 17)
    for i in range(4):
        a("s_add_u32", "s29", "s28", i * 32768 - i * 1024)
        a("v_add_u32", V(VB[i]), "s29", V(w0 if i < 2 else w1))
    a("s_lshl_b32", "s30", "s3", 12)
    a("s_add_u32", "s31", "s12", "s13")
    if "rot2" in abl: a("s_lshl_b32", "s29", "s31", 2)
    a("s_mul_i32", "s41", "s31", 52)
    a("s_lshr_b32", "s41", "s41", 8)
    a("s_mul_i32", "s41", "s41", 5)
    a("s_sub_u32", "s41", "s31", "s41")
    if "rot2" in abl: a("s_mov_b32", "s31", "s29")
    a("s_waitcnt", "lgkmcnt(0)")
    srd(a, SR_CKV, 6, SZ["ckv"])
    a("s_cmp_eq_u32", "s14", 0)
    a("s_cselect_b32", S(SR_W), "s8", "s10")
    a("s_cselect_b32", S(SR_W + 1), "s9", "s11")
    a("s_mov_b32", S(SR_W + 2), hex(SZ["wuk"]))
    a("s_mov_b32", S(SR_W + 3), "0x20000")
    vm = VmQ(a)
    entries = []
    for s in range(8): entries += [("A", s), ("B", s)]
    for i in range(5): entries += [("X", 2 * i), ("W", i), ("X", 2 * i + 1)]
    eidx = {e: n for n, e in enumerate(entries)}
    slot_of = lambda e: (eidx[e] % 5) * SLOT
    def dma(vmq, e):
        kind, s = e
        vv, sr, so = {"A": (VA, SR_CKV, s * 128), "B": (VB, SR_W, s * 64 * 8192), "X": (VX, SR_X, s * 128), "W": (VW, SR_WQ, s * 128 * 8192)}[kind]
        def mk(i):
            def f():
                if i == 0:
                    a("s_add_u32", "m0", "s30", slot_of(e))
                    if "rot" in abl and kind in "AB":
                        a("s_add_u32", "s32", "s31", s)
                        a("s_and_b32", "s32", "s32", 7)
                        a("s_lshl_b32", "s32", "s32", 7 if kind == "A" else 19)
                    elif "rotq" in abl and kind in "XW":
                        pr = s // 2 if kind == "X" else s
                        a("s_add_u32", "s32", "s41", pr)
                        a("s_cmp_ge_u32", "s32", 5)
                        a("s_cselect_b32", "s33", 5, 0)
                        a("s_sub_u32", "s32", "s32", "s33")
                        a("s_lshl_b32", "s32", "s32", 8 if kind == "X" else 20)
                        if kind == "X" and s % 2: a("s_add_u32", "s32", "s32", 128)
                    else:
                        a("s_mov_b32", "s32", so)
                nt = " nt" if (("ntw" in abl and kind in "BW") or ("nta" in abl and kind in "AX")) else ""
                vmq.issue(e, "buffer_load_dwordx4", V(vv[i]), S(sr, 4), "s32", mods=f"offen offset:{i*1024}{nt} lds")
            return f
        return [mk(i) for i in range(4)]
    for e in entries[0:2]:
        for f in dma(vm, e): f()
    srd(a, SR_KV, 38, 32 * MB)
    a("s_add_u32", S(SR_KV + 2), "s12", 1)
    a("s_lshl_b32", S(SR_KV + 2), S(SR_KV + 2), 20)
    srd(a, SR_CTX, 38, 2048 * 4096 * 2, off=WS_CTX)
    srd(a, SR_X, 4, SZ["x"])
    srd(a, SR_WQ, 48, SZ["wq"])
    srd(a, SR_DBG, 36, 256)
    srd(a, SR_FL, 38, 32768, off=WS_FL2)
    ne = a.newlabel("noepoch")
    a("v_mov_b32", V(220), 0)
    a("v_mov_b32", V(222), 0); a("v_mov_b32", V(223), 0)
    a("s_lshl_b32", "s28", "s2", 3)
    a("s_add_u32", "s28", "s28", "s3")
    a("s_cmp_lg_u32", "s28", 4)
    a("s_cbranch_scc1", ne)
    a("s_mov_b64", "exec", 1)
    a("s_movk_i32", "s28", 8192)
    a("buffer_load_dword", V(222), V(220), S(SR_FL, 4), "s28", mods="offen sc1")
    a("s_waitcnt", "vmcnt(0)")
    a("s_mov_b32", "s29", 1664525)
    a("v_mul_lo_u32", V(222), V(222), "s29")
    a("v_add_u32", V(222), 1013904223, V(222))
    a("v_mov_b32", V(223), 1)
    a("buffer_store_dwordx2", V(222, 2), V(220), S(SR_DBG, 4), 0, mods="offen sc1")
    a("buffer_store_dword", V(222), V(220), S(SR_FL, 4), "s28", mods="offen sc1")
    a("s_mov_b64", "exec", -1)
    a.label(ne)
    a("s_sub_u32", "s38", 15, "s13")
    a("s_cmp_eq_u32", "s14", 0)
    a("s_cselect_b32", "s39", "s38", "s13")
    a("s_lshl_b32", "s40", "s39", 2)
    a("s_add_u32", "s40", "s40", "s15")
    a("s_lshl_b32", "s28", "s40", 5)
    a("v_add_u32", V(t0), "s28", V(t3))
    a("v_mul_u32_u24", V(t0), 1280, V(t0))
    for i in range(4):
        a("v_add3_u32", V(VX[i]), V(t0), V(t1 if i % 2 == 0 else t2), 0)
        if i: a("v_add_u32", V(VX[i]), i * 8 * 1280 - i * 1024, V(VX[i]))
    a("s_lshl_b32", "s28", "s3", 17)
    for i in range(4):
        a("s_add_u32", "s29", "s28", i * 32768 - i * 1024)
        a("v_add_u32", V(VW[i]), "s29", V(w0 if i < 2 else w1))
    for e in entries[2:4]:
        for f in dma(vm, e): f()
    touches = []
    if "notouch" not in abl:
        tv = 14; TD = [216, 217, 218, 219]
        a("v_lshrrev_b32", V(t0), 1, "v2")
        a("v_and_b32", V(tv), 1, "v2")
        a("s_lshl_b32", "s29", "s13", 6); a("s_lshl_b32", "s33", "s15", 5); a("s_add_u32", "s29", "s29", "s33")
        a("v_add_u32", V(TD[0]), "s29", V(t0))
        a("v_lshlrev_b32", V(TD[0]), 13, V(TD[0]))
        a("v_lshl_add_u32", V(TD[0]), V(tv), 7, V(TD[0]))
        a("s_lshl_b32", "s33", "s12", 8)
        a("v_add_u32", V(TD[0]), "s33", V(TD[0]))
        if "lin" in abl:
            a("s_lshl_b32", "s29", "s2", 14); a("s_lshl_b32", "s33", "s15", 13); a("s_add_u32", "s29", "s29", "s33")
            a("v_lshlrev_b32", V(TD[0]), 7, "v2")
            a("v_add_u32", V(TD[0]), "s29", V(TD[0]))
        a("s_lshl_b32", "s29", "s2", 13)
        a("v_lshlrev_b32", V(TD[1]), 7, "v2")
        a("v_add_u32", V(TD[1]), "s29", V(TD[1]))
        a("s_mul_i32", "s29", "s2", 10240); a("s_and_b32", "s33", "s3", 1); a("s_lshl_b32", "s33", "s33", 13); a("s_add_u32", "s29", "s29", "s33")
        a("v_lshlrev_b32", V(TD[2]), 7, "v2")
        a("v_add_u32", V(TD[2]), "s29", V(TD[2]))
        a("s_mul_i32", "s29", "s13", 80); a("s_lshl_b32", "s33", "s15", 5); a("s_add_u32", "s29", "s29", "s33")
        a("v_add_u32", V(TD[3]), "s29", V(t0))
        a("v_lshlrev_b32", V(TD[3]), 13, V(TD[3]))
        a("v_lshl_add_u32", V(TD[3]), V(tv), 7, V(TD[3]))
        a("s_lshl_b32", "s33", "s12", 8)
        a("v_add_u32", V(TD[3]), "s33", V(TD[3]))
        if "linq" in abl:
            a("s_mul_i32", "s29", "s2", 20480); a("s_lshl_b32", "s33", "s15", 13); a("s_add_u32", "s29", "s29", "s33")
            a("v_lshlrev_b32", V(TD[3]), 7, "v2")
            a("v_add_u32", V(TD[3]), "s29", V(TD[3]))
        TA_ = opt(abl, "ta", 0); TB_ = opt(abl, "tb", 2)
        a("s_cmp_eq_u32", "s3", 2)
        for k in range(3): a("s_cselect_b32", S(96 + k), S(SR_CKV + k), S(SR_W + k))
        a("s_mov_b32", "s99", "0x20000")
        a("s_cselect_b64", "vcc", -1, 0)
        a("v_cndmask_b32", V(TD[0]), V(TD[0]), V(TD[1]), "vcc")
        a("s_cselect_b32", "s100", 0, "0x40000000")
        a("s_cmp_lt_u32", "s15", 2)
        a("s_cselect_b32", "s100", 0, "s100")
        if "nosm" not in abl:
            a("s_load_dwordx2", S(4, 2), S(0, 2), KA["shk"])
            a("s_load_dwordx4", S(8, 4), S(0, 2), KA["ssmd"])
            a("v_lshlrev_b32", V(TD[1]), 7, "v2")
            a("s_waitcnt", "lgkmcnt(0)")
            for w_, pr, nm in ((3, 4, "shk"), (6, 10, "gw"), (7, 8, "ssmd")):
                a("s_cmp_eq_u32", "s3", w_)
                a("s_cselect_b32", "s96", S(pr), "s96"); a("s_cselect_b32", "s97", S(pr + 1), "s97")
                a("s_cselect_b32", "s98", SZ[nm], "s98")
                a("s_cselect_b32", "s100", 0, "s100")
                a("s_cselect_b64", "vcc", -1, 0)
                a("v_cndmask_b32", V(TD[0]), V(TD[0]), V(TD[1]), "vcc")
        a("s_add_u32", "s28", "s14", 2)
        a("s_cmp_lt_u32", "s15", "s28")
        a("s_cselect_b32", "s101", 0, "0x40000000")
        if "nota" in abl: TA_ = 99
        if "notb" in abl: TB_ = 99
        touches = [(TA_, 0, TD[0], 96, "s100", None), (TB_, 30, TD[2], SR_X, "s101", 0), (TB_, 30, TD[3], SR_WQ, "s101", 1)]
        if "thinb" in abl:
            NB = opt(abl, "nb", 5); B0 = opt(abl, "b0", 1)
            lx = -(-20 // NB); lw = -(-20 // NB)
            a("s_mul_i32", "s29", "s2", 10240); a("s_mul_i32", "s33", "s15", 2560); a("s_add_u32", "s29", "s29", "s33")
            a("v_min_u32", V(TD[2]), lx - 1, "v2"); a("v_lshlrev_b32", V(TD[2]), 7, V(TD[2])); a("v_add_u32", V(TD[2]), "s29", V(TD[2]))
            a("s_mul_i32", "s29", "s13", 80); a("s_mul_i32", "s33", "s15", 20); a("s_add_u32", "s29", "s29", "s33")
            a("v_min_u32", V(TD[3]), lw - 1, V(t0)); a("v_add_u32", V(TD[3]), "s29", V(TD[3])); a("v_lshlrev_b32", V(TD[3]), 13, V(TD[3]))
            a("v_lshl_add_u32", V(TD[3]), V(tv), 7, V(TD[3]))
            a("s_lshl_b32", "s33", "s12", 8); a("v_add_u32", V(TD[3]), "s33", V(TD[3]))
            touches = touches[:1]
            for k in range(NB):
                touches += [(B0 + k, 30, TD[2], SR_X, k * lx * 128, 0), (B0 + k, 30, TD[3], SR_WQ, k * lw * 8192, 1)]
        if "xl2" in abl:
            XS = opt(abl, "xs", 5)
            a("s_lshr_b32", "s28", "s2", 3)
            a("s_mul_i32", "s28", "s28", 81920)
            a("s_lshl_b32", "s29", "s3", 13)
            a("s_add_u32", "s28", "s28", "s29")
            a("v_lshlrev_b32", V(224), 7, "v2")
            a("v_add_u32", V(224), "s28", V(224))
            a("s_cmp_lt_u32", "s3", 2)
            a("s_cselect_b32", "s42", 0, "0x40000000")
            a("s_add_u32", "s42", "s42", 65536)
            touches += [(XS, 30, 224, SR_X, 0, None), (XS + 1, 30, 224, SR_X, "s42", None)]
    def touch(k, vmq):
        (_, _, reg, sr_, so, _) = touches[k]
        def f():
            so_ = so
            if isinstance(so, int) and so:
                a("s_mov_b32", "s101", so); so_ = "s101"
            vmq.issue("t", "buffer_load_dword", V(208 + k % 8), V(reg), S(sr_, 4), so_, mods="offen")
        return f
    G = 1
    a("v_and_b32", V(t0), 15, "v2")
    a("v_lshrrev_b32", V(G), 4, "v2")
    a("v_lshlrev_b32", V(t3), 2, V(G))
    a("v_sub_u32", V(vQI), V(t0), V(t3))
    a("v_lshlrev_b32", V(7), 7, V(t0))
    a("v_bfe_u32", V(t1), "v2", 1, 3)
    a("v_xor_b32", V(t1), V(t1), V(G))
    for ks in range(2):
        a("v_xor_b32", V(AL[ks]), 4 * ks, V(t1))
        a("v_lshl_add_u32", V(AL[ks]), V(AL[ks]), 4, V(7))
    a("v_lshlrev_b32", V(t1), 11, V(G))
    a("v_bfe_u32", V(t0), "v2", 2, 2)
    a("v_lshl_add_u32", V(t1), V(t0), 6, V(t1))
    a("v_and_b32", V(t0), 3, "v2")
    a("v_lshl_add_u32", V(t1), V(t0), 3, V(t1))
    a("v_bfe_u32", V(t0), "v2", 4, 1)
    a("v_lshl_add_u32", V(BL[0]), V(t0), 5, V(t1))
    a("v_xor_b32", V(BL[1]), 32, V(BL[0]))
    a("s_lshr_b32", "s34", "s15", 1)
    a("s_lshl_b32", "s34", "s34", 14)
    a("s_lshl_b32", "s35", "s14", 14)
    a("s_and_b32", "s29", "s15", 1)
    a("s_lshl_b32", "s29", "s29", 9)
    a("s_add_u32", "s35", "s35", "s29")
    a("s_lshl_b32", "s28", "s12", 6)
    a("s_lshl_b32", "s29", "s13", 3)
    a("s_add_u32", "s28", "s28", "s29")
    a("s_lshr_b32", "s29", "s15", 1)
    a("s_lshl_b32", "s29", "s29", 2)
    a("s_add_u32", "s28", "s28", "s29")
    a("s_lshl_b32", "s28", "s28", 14)
    a("s_lshl_b32", "s29", "s14", 13)
    a("s_add_u32", "s28", "s28", "s29")
    a("s_and_b32", "s29", "s15", 1)
    a("s_add_u32", "s33", "s14", 11)
    a("s_lshl_b32", "s29", "s29", "s33")
    a("s_add_u32", "s28", "s28", "s29")
    a("v_lshlrev_b32", V(vKV), 4, "v2")
    a("v_add_u32", V(VST[0]), "s28", V(vKV))
    a("s_lshr_b32", "s29", 4096, "s14")
    a("v_add_u32", V(VST[1]), "s29", V(VST[0]))
    TOK = 16; WF = [48, 64]; ACC = 80; PK = 16
    tok = lambda kt: V(TOK + 4 * kt, 4)
    wf = lambda s, dt: V(WF[s] + 4 * dt, 4)
    accn = lambda kt, dt: ACC + 4 * (kt * 4 + dt)
    acc = lambda kt, dt: V(accn(kt, dt), 4)
    def kv_addr(s):
        a("s_add_u32", "s28", "s34", slot_of(("A", s)))
        a("s_add_u32", "s29", "s35", slot_of(("B", s)))
        for ks in range(2): a("v_add_u32", V(AA[ks]), "s28", V(AL[ks]))
        for p in range(2): a("v_add_u32", V(BA[p]), "s29", V(BL[p]))
    def rd_w(q, ks, dt, t):
        return lambda: q.issue("ds_read_b64_tr_b16", V(WF[ks] + 4 * dt + 2 * t, 2), V(BA[dt & 1]), mods=f"offset:{ks*8192 + t*1024 + (dt>>1)*256}")
    def rd_t(q, ks, kt):
        return lambda: q.issue("ds_read_b128", tok(kt), V(AA[ks]), mods=f"offset:{kt*2048}")
    BAR = 8
    def tail_reads(q):
        L = [(BAR, rd_w(q, 0, 0, 0)), (BAR, rd_w(q, 0, 0, 1)), (BAR + 1, rd_t(q, 0, 0)), (BAR + 1, rd_w(q, 0, 1, 0)),
             (BAR + 2, rd_w(q, 0, 1, 1)), (BAR + 2, rd_t(q, 0, 1)), (BAR + 3, rd_t(q, 0, 2))]
        L += [(BAR + 4, rd_w(q, 0, 2, 0)), (BAR + 5, rd_w(q, 0, 2, 1)), (BAR + 6, rd_w(q, 0, 3, 0)), (BAR + 7, rd_t(q, 0, 3)), (BAR + 8, rd_w(q, 0, 3, 1))]
        L += [(4 * kt + 3, rd_t(q, 0, kt)) for kt in range(4, 8)]
        return L
    kv_addr(0)
    early = [k for k, t in enumerate(touches) if t[0] == -1]
    if early:
        a("s_barrier")
        for k in early: touch(k, vm)()
    st_.stamp()
    vm.need(("A", 0), ("B", 0))
    a("s_barrier")
    st_.stamp()
    if "endst" in abl: a("s_endpgm")
    q0 = LdsQ(a)
    for _, f in tail_reads(q0): f()
    vm_entry = list(vm.q); q_entry = list(q0.q)
    lblV = a.newlabel("kv_v"); lblQ = a.newlabel("qphase")
    a("s_cmp_eq_u32", "s14", 0)
    a("s_cbranch_scc0", lblV)
    for grp in range(2):
        if grp == 1: a.label(lblV)
        q = LdsQ(a, q_entry); vm = VmQ(a, vm_entry)
        for s in range(8):
            for ks in range(2):
                fill = [[] for _ in range(32)]
                if ks == 0:
                    for kt in range(8): fill[4 * kt + 3].append(rd_t(q, 1, kt))
                    n = 0
                    for dt in range(4):
                        for t in range(2):
                            fill[4 * n + 1].append(rd_w(q, 1, dt, t)); n += 1
                    for i, f in enumerate(dma(vm, entries[2 * s + 4])): fill[8 * i + 2].append(f)
                    if s == 5 and grp == 1:
                        def eld():
                            sk = a.newlabel("noeld")
                            a("s_cmp_lg_u32", "s3", 4)
                            a("s_cbranch_scc1", sk)
                            a("buffer_load_dwordx2", V(222, 2), V(220), S(SR_DBG, 4), 0, mods="offen sc1")
                            a.label(sk)
                        fill[0].append(eld)
                    for k, tch in enumerate(touches):
                        if tch[0] == s and tch[5] in (None, grp): fill[tch[1]].append(touch(k, vm))
                else:
                    if s < 7:
                        for n, f in tail_reads(q): fill[n].append(f)
                        for i, f in enumerate(dma(vm, entries[2 * s + 5])): fill[BAR + 2 + 6 * i].append(f)
                    else:
                        for i, f in enumerate(dma(vm, entries[19]) + dma(vm, entries[20])): fill[BAR + 3 * i].append(f)
                for n in range(32):
                    kt, dt = n // 4, n % 4
                    if ks == 1 and n == BAR:
                        q.drain()
                        vm.need(entries[2 * s + 2], entries[2 * s + 3])
                        a("s_barrier")
                        if "kvst" in abl:
                            st_.n = 4 + s; st_.stamp()
                        if s < 7: kv_addr(s + 1)
                    q.need(tok(kt), wf(ks, dt))
                    c = acc(kt, dt) if (s or ks) else "0"
                    if grp == 0: a(MF16, acc(kt, dt), wf(ks, dt), tok(kt), c)
                    else: a(MF16, acc(kt, dt), tok(kt), wf(ks, dt), c)
                    for f in fill[n]: f()
        for n in range(16):
            ksub, u = n // 4, n % 4
            if grp == 0:
                kt2, Tp = u // 2, u % 2
                b0 = accn(2 * ksub + kt2, 2 * Tp); b1 = accn(2 * ksub + kt2, 2 * Tp + 1)
            else:
                b0 = accn(2 * ksub, u); b1 = accn(2 * ksub + 1, u)
            P = PK + 4 * n
            a("v_cvt_pk_bf16_f32", V(P), V(b0), V(b0 + 1))
            a("v_cvt_pk_bf16_f32", V(P + 1), V(b0 + 2), V(b0 + 3))
            a("v_cvt_pk_bf16_f32", V(P + 2), V(b1), V(b1 + 1))
            a("v_cvt_pk_bf16_f32", V(P + 3), V(b1 + 2), V(b1 + 3))
        if grp == 0:
            a("s_branch", lblQ); vm_after = list(vm.q)
        else:
            assert vm.q == vm_after
    a.label(lblQ)
    if "kvst" in abl:
        st_.stamp(real=True); st_.flush("s3", wg=opt(abl, "wg", 0)); a("s_endpgm"); st_.en = False
    if "endkv" in abl: a("s_endpgm")
    st_.stamp()
    QACC = 144; XF = [80, 96]; QW = 112
    qaccn = lambda dt, qt: QACC + 4 * (dt * 4 + qt)
    xf = lambda ks, qt: V(XF[ks] + 4 * qt, 4)
    qw = lambda dt: V(QW + 4 * dt, 4)
    a("s_xor_b32", "s34", "s30", 16384)
    a("s_lshl_b32", "s35", "s14", 9)
    def q_addr(s):
        a("s_add_u32", "s28", "s30", slot_of(("X", s)))
        a("s_add_u32", "s29", "s34", slot_of(("X", s)))
        for ks in range(2): a("v_add_u32", V(AA[ks]), "s28", V(AL[ks]))
        for ks in range(2): a("v_add_u32", V(AA2[ks]), "s29", V(AL[ks]))
        if s % 2 == 0:
            a("s_add_u32", "s28", "s35", slot_of(("W", s // 2)))
            for p in range(2): a("v_add_u32", V(BA[p]), "s28", V(BL[p]))
    q = LdsQ(a)
    def rq_w(s, ks, dt, ts=(0, 1)):
        def f():
            for t in ts:
                q.issue("ds_read_b64_tr_b16", V(QW + 4 * dt + 2 * t, 2), V(BA[dt & 1]), mods=f"offset:{(s%2)*16384 + ks*8192 + t*1024 + (dt>>1)*256}")
        return f
    def rq_x(ks, qt):
        return lambda: q.issue("ds_read_b128", xf(ks, qt), V((AA if qt < 2 else AA2)[ks]), mods=f"offset:{(qt%2)*2048}")
    def kvstore(n):
        def f():
            ksub, u = n // 4, n % 4
            if "nokvst" in abl: return
            a("s_mov_b32", "s33", ksub * 16384)
            vm.issue("st", "buffer_store_dwordx4", V(PK + 4 * n, 4), V(VST[u // 2]), S(SR_KV, 4), "s33", mods=f"offen offset:{(u%2)*1024}" + ("" if "plainst" in abl else " nt" if "ntst" in abl else " sc1 nt" if "sc1nt" in abl else " sc0 sc1" if "sc01" in abl else " sc1"))
        return f
    q_addr(0)
    for f in [rq_w(0, 0, 0), rq_x(0, 0), rq_x(0, 1), rq_x(0, 2), rq_x(0, 3), rq_w(0, 0, 1), rq_w(0, 0, 2), rq_w(0, 0, 3)]: f()
    QBAR = 5
    SPS = opt(abl, "sps", 3)
    SIG = opt(abl, "sig", 7)
    POLL = opt(abl, "poll", 8)
    a("s_movk_i32", "s42", 255)
    a("s_lshl_b32", "s29", "s12", 7)
    a("v_and_b32", V(10), 7, "v2")
    a("v_lshlrev_b32", V(10), 2, V(10))
    a("v_add_u32", V(10), "s29", V(10))
    def pollload():
        a("buffer_load_dword", V(11), V(10), S(SR_FL, 4), 0, mods="offen sc1")
    def idma():
        L = []
        def k0():
            a("s_lshl_b32", "s28", "s12", 20)
            a("s_lshr_b32", "s29", "s30", 2)
            a("s_add_u32", "s43", "s28", "s29")
            a("s_add_u32", "m0", "s29", K0OFF)
            a("s_add_u32", "s28", "s28", "s30")
            a("buffer_load_dwordx4", V(vKV), S(SR_KV, 4), "s43", mods="offen sc1 lds")
        L.append(k0)
        for k in range(3):
            for i in range(4):
                def f(k=k, i=i):
                    if i == 0:
                        a("s_add_u32", "m0", "s30", k * 32768)
                        a("s_add_u32", "s43", "s28", 8192 + k * 32768)
                    a("buffer_load_dwordx4", V(vKV), S(SR_KV, 4), "s43", mods=f"offen offset:{i*1024} sc1 lds")
                L.append(f)
        return L
    nst = 0
    for s in range(10):
        for ks in range(2):
            fill = [[] for _ in range(16)]
            if ks == 0:
                if "qs" in abl:
                    for qt, sl in enumerate((1, 2, 5, 6)): fill[sl].append(rq_x(1, qt))
                    for dt in range(3):
                        fill[4 * dt + 3].append(rq_w(s, 1, dt, (0,))); fill[4 * dt + 4].append(rq_w(s, 1, dt, (1,)))
                    fill[15].append(rq_w(s, 1, 3))
                else:
                    for qt in range(4): fill[2 * qt].append(rq_x(1, qt))
                    for dt in range(4): fill[4 * dt + 3].append(rq_w(s, 1, dt))
                for k in range(SPS):
                    if nst < 16: fill[1 + (k * 14) // SPS].append(kvstore(nst)); nst += 1
                if s >= 8:
                    for n_ in range(16):
                        for z in range(2): fill[n_].append(lambda r=R_O + 32 * (s - 8) + 2 * n_ + z: a("v_mov_b32", V(r), 0))
                if s == 7:
                    for n_ in range(16): fill[n_].append(lambda r=228 + n_: a("v_mov_b32", V(r), 0))
            else:
                if s < 9 and "qs" in abl:
                    seq = [rq_w(s + 1, 0, 0, (0,)), rq_w(s + 1, 0, 0, (1,)), rq_x(0, 0), rq_x(0, 1), rq_x(0, 2), rq_x(0, 3),
                           rq_w(s + 1, 0, 1, (0,)), rq_w(s + 1, 0, 1, (1,)), rq_w(s + 1, 0, 2, (0,)), rq_w(s + 1, 0, 2, (1,)), rq_w(s + 1, 0, 3)]
                    for k_, f_ in enumerate(seq): fill[QBAR + k_].append(f_)
                elif s < 9:
                    fill[QBAR].append(rq_w(s + 1, 0, 0))
                    for qt in range(4): fill[QBAR + 1 + qt].append(rq_x(0, qt))
                    for dt in range(1, 4): fill[max(4 * dt + 3, QBAR + 3)].append(rq_w(s + 1, 0, dt))
                nx = []
                if s % 2 == 0 and s + 3 <= 9: nx = dma(vm, ("X", s + 3))
                if s % 2 == 1 and s + 3 <= 9: nx = dma(vm, ("X", s + 3)) + dma(vm, ("W", (s + 3) // 2))
                if s == 9: nx = idma()
                for i, f in enumerate(nx): fill[QBAR + (0 if s == 9 else 1) + (i * (15 - QBAR)) // len(nx)].append(f)
            for n in range(16):
                dt, qt = n // 4, n % 4
                if ks == 1 and n == QBAR:
                    q.drain()
                    need = [("X", s + 1), ("W", (s + 1) // 2)]
                    if s == SIG:
                        assert nst == 16
                        need.append("st")
                    vm.need(*need)
                    if s == 9: st_.stamp()
                    if s == 9:
                        skp = a.newlabel("skip_poll")
                        a("s_cmp_lg_u32", "s3", 4)
                        a("s_cbranch_scc1", skp)
                        a("s_mov_b32", "s41", 0)
                        a("s_waitcnt", "vmcnt(0)")
                        pl = a.label(a.newlabel("poll"))
                        a("v_cmp_eq_u32", S(28, 2), V(11), V(222), ann={"val": lambda c: 0xff})
                        a("s_and_b32", "s29", "s28", "s42")
                        a("s_cmp_eq_u32", "s29", "s42")
                        a("s_cbranch_scc1", skp)
                        a("s_sleep", 4)
                        pollload()
                        a("s_waitcnt", "vmcnt(0)")
                        a("s_add_u32", "s41", "s41", 1)
                        a("s_cmp_lt_u32", "s41", 1 << 19)
                        a("s_cbranch_scc1", pl)
                        a.label(skp)
                    a("s_barrier")
                    if s == POLL:
                        sk = a.newlabel("nopoll")
                        a("s_cmp_lg_u32", "s3", 4)
                        a("s_cbranch_scc1", sk)
                        pollload()
                        a.label(sk)
                    if s == SIG:
                        sk = a.newlabel("nosig"); ok = a.newlabel("epok")
                        a("s_cmp_lg_u32", "s3", 4)
                        a("s_cbranch_scc1", sk)
                        a("s_mov_b32", "s41", 0)
                        el = a.label(a.newlabel("eploop"))
                        a("v_readfirstlane_b32", "s29", V(223), ann={"val": lambda c: 1})
                        a("s_cmp_eq_u32", "s29", 1)
                        a("s_cbranch_scc1", ok)
                        a("s_sleep", 8)
                        a("buffer_load_dwordx2", V(222, 2), V(220), S(SR_DBG, 4), 0, mods="offen sc1")
                        a("s_waitcnt", "vmcnt(0)")
                        a("s_add_u32", "s41", "s41", 1)
                        a("s_cmp_lt_u32", "s41", 1 << 19)
                        a("s_cbranch_scc1", el)
                        a.label(ok)
                        a("s_lshl_b32", "s28", "s12", 7)
                        a("s_lshl_b32", "s29", "s13", 2)
                        a("s_add_u32", "s28", "s28", "s29")
                        a("s_mov_b64", "exec", 1)
                        a("buffer_store_dword", V(222), V(220), S(SR_FL, 4), "s28", mods="offen sc1")
                        a("s_mov_b64", "exec", -1)
                        a.label(sk)
                    if s < 9: q_addr(s + 1)
                q.need(qw(dt), xf(ks, qt))
                d = V(qaccn(dt, qt), 4)
                a(MF16, d, qw(dt), xf(ks, qt), d if (s or ks) else "0")
                for f in fill[n]: f()
    if "endq" in abl: a("s_endpgm")
    Qn = lambda qt, T: R_Q + 4 * (qt * 4 + T)
    Q = lambda qt, T: V(Qn(qt, T), 4)
    a("s_load_dwordx2", S(8, 2), S(0, 2), KA["wo"])
    a("s_load_dwordx4", S(4, 4), S(0, 2), KA["bk"])
    a("s_load_dwordx2", S(10, 2), S(0, 2), KA["ssmk"])
    a("v_mov_b32", V(12), hex(f32bits(QSCALE))); a("v_mov_b32", V(13), hex(f32bits(QSCALE)))
    a("s_add_u32", "s29", "s34", XCH)
    a("v_add_u32", V(8), "s29", V(vKV))
    a("s_add_u32", "s29", "s30", XCH)
    a("v_add_u32", V(9), "s29", V(vKV))
    def cvtq(dst, Tp, qt):
        for hf in range(2):
            b = qaccn(2 * Tp + hf, qt)
            for r_ in (0, 2): a("v_pk_mul_f32", V(b + r_, 2), V(b + r_, 2), V(12, 2))
            a("v_cvt_pk_bf16_f32", V(dst + 2 * hf), V(b), V(b + 1))
            a("v_cvt_pk_bf16_f32", V(dst + 2 * hf + 1), V(b + 2), V(b + 3))
    for qt in range(2):
        for Tp in range(2):
            d = QW + 4 * (qt * 2 + Tp)
            cvtq(d, Tp, 2 + qt)
            a("ds_write_b128", V(8), V(d, 4), mods=f"offset:{(qt*2+Tp)*1024}")
    a("s_lshl_b32", "s28", "s12", 20)
    a("s_lshl_b32", "s29", "s15", 13)
    a("s_add_u32", "s28", "s28", "s29")
    a("s_add_u32", "s28", "s28", 8192)
    a("v_add_u32", V(vDMA), "s28", V(vKV))
    a("s_lshl_b32", "s30", "s15", 13)
    a("s_add_u32", "s30", "s30", 3 * 32768)
    a("s_mov_b32", "s32", 3 * 32768)
    a("s_lshl_b32", "s33", "s38", 16)
    a("s_add_u32", "s33", "s33", 65536)
    a("s_lshl_b32", "s38", "s38", 1)
    a("s_mov_b32", "s39", 0)
    TL = opt(abl, "tl", 22)
    a("s_waitcnt", "lgkmcnt(0)")
    a("s_cmp_eq_u32", "s15", 0)
    a("s_cselect_b32", "s56", "s4", "s6"); a("s_cselect_b32", "s57", "s5", "s7")
    a("s_cmp_lt_u32", "s15", 2)
    a("s_cselect_b32", "s56", "s56", "s8"); a("s_cselect_b32", "s57", "s57", "s9")
    a("s_mov_b32", "s59", "0x20000")
    a("s_mul_i32", "s49", "s12", 5); a("s_add_u32", "s49", "s49", "s13"); a("s_sub_u32", "s49", "s49", 3)
    a("s_lshl_b32", "s49", "s49", 14)
    a("s_cmp_eq_u32", "s15", 3)
    a("s_cselect_b32", "s28", hex(SZ["bk"]), 0)
    a("s_add_u32", "s49", "s49", "s28")
    a("s_add_u32", "s58", "s49", 16384)
    a("s_cmp_lt_u32", "s13", 3)
    a("s_cselect_b32", "s58", 0, "s58")
    a("s_cselect_b32", "s49", 0, "s49")
    a("v_min_u32", V(14), TL - 1, V(vLANE))
    a("v_lshlrev_b32", V(14), 7, V(14))
    def adma(gate=False):
        def mk(i):
            def f():
                if i == 0 and gate:
                    a("s_cmp_lt_u32", "s32", "s33")
                    a("s_cselect_b32", S(SR_KV + 2), S(SR_KV + 2), 0)
                if i % 4 == 0:
                    a("s_add_u32", "m0", "s30", (i // 4) * 4096)
                    a("s_add_u32", "s35", "s32", (i // 4) * 4096)
                a("buffer_load_dwordx4", V(vDMA), S(SR_KV, 4), "s35", mods=f"offen offset:{(i%4)*1024} sc1 lds", ann={"half": 1})
                if i == 7 and not gate:
                    a("buffer_load_dword", V(15), V(14), S(56, 4), "s49", mods="offen")
                    a("s_add_u32", "s49", "s49", TL * 128)
                if i == 7:
                    a("s_add_u32", "s30", "s30", 32768)
                    a("s_and_b32", "s30", "s30", 131071)
                    a("s_add_u32", "s32", "s32", 32768)
            return f
        return [mk(i) for i in range(8)]
    a("s_mov_b32", "s28", hex(f32bits(QSCALE)))
    R_LM = [228, 236]; R_ONE = 244
    def zero_init():
        for i in range(16): a("v_mov_b32", V(R_C + i), 0)
        for i in range(4): a("v_mov_b32", V(R_ONE + i), "0x3f803f80")
    lg1 = a.newlabel("cv_g1"); lgd = a.newlabel("cv_done")
    a("s_cmp_eq_u32", "s14", 0)
    a("s_cbranch_scc0", lg1)
    for g in range(2):
        if g == 1: a.label(lg1)
        for qt in range(2):
            for Tp in range(2): cvtq(Qn(qt, 2 * g + Tp), Tp, qt)
        zero_init()
        a("s_waitcnt", "vmcnt(8) lgkmcnt(0)")
        a("s_barrier")
        for qt in range(2):
            for Tp in range(2):
                a("ds_read_b128", Q(qt, 2 * (1 - g) + Tp), V(9), mods=f"offset:{(qt*2+Tp)*1024}")
        if g == 0: a("s_branch", lgd)
    a.label(lgd)
    a("s_lshl_b32", "s28", "s40", 6)
    a("s_add_u32", "s28", "s28", "s12")
    a("s_lshl_b32", "s28", "s28", 12)
    a("v_add_u32", V(vST), "s28", V(vKV))
    a("s_mov_b32", "s42", hex(f32bits(2.0 ** 40)))
    a("s_mov_b32", "s43", hex(NEG))
    a("v_add_u32", V(R_X), K0OFF, V(vKV))
    On = lambda dt, qt: R_O + 4 * (dt * 2 + qt)
    O = lambda dt, qt: V(On(dt, qt), 4)
    Sn = lambda sb, kt2, qt: R_S[sb] + 4 * (kt2 * 2 + qt)
    Cn = lambda kt2, qt: R_C + 4 * (kt2 * 2 + qt)
    F = lambda i: V(R_F + 4 * i, 4)
    def apply_mask():
        a("v_mov_b32", V(R_X + 1), "s43")
        for r_ in range(4):
            a("v_cmp_le_i32", "vcc", r_, V(vQI))
            a("v_mov_b32", V(Cn(1, 0) + r_), V(R_X + 1))
            a("v_cndmask_b32", V(Cn(0, 0) + r_), V(R_X + 1), V(Cn(0, 0) + r_), "vcc")
            a("v_cndmask_b32", V(Cn(1, 1) + r_), V(R_X + 1), V(Cn(1, 1) + r_), "vcc")
    def rdK(q, i, p): return lambda: q.issue("ds_read_b128", F(i), V(vKV), mods=f"offset:{p*16384 + 8192 + i*1024}")
    def rdV(q, i, p): return lambda: q.issue("ds_read_b128", F(i), V(vKV), mods=f"offset:{p*16384 + i*1024}")
    R_LM = [228, 236]
    R_ONE = 244
    MSUM = True
    Lr = lambda sb, qt: R_LM[sb] + 4 * qt
    CHK = 47
    ET = [t + 0.5 for t in (10, 12, 14, 16, 18, 20, 22, 24, 26, 28, 30, 32, 34)] + [35.8, 36.5, 38.5]
    CT = [t + 0.5 for t in (17, 19, 23, 27, 31, 33, 37, 39)]
    def sm(sb):
        ops = []
        order = [(0, 0, 0), (0, 0, 1), (0, 1, 0), (0, 1, 1), (1, 0, 0), (1, 0, 1), (1, 1, 0), (1, 1, 1)]
        for ne, t in enumerate(ET):
            kt2, qt, pi = order[ne // 2]
            ops.append((t, lambda s0=Sn(sb, kt2, qt) + 2 * pi + ne % 2, ta=R_T + ne % 8: a("v_exp_f32", V(ta), V(s0))))
        for nc, t in enumerate(CT):
            kt2, qt, pi = order[nc]
            ops.append((t, lambda ta=R_T + (2 * nc) % 8, d=R_P[sb] + 4 * qt + 2 * kt2 + pi: a("v_cvt_pk_bf16_f32", V(d), V(ta), V(ta + 1))))
        for qt, t in ((0, 35.7), (1, 40.7)):
            ops.append((t, lambda qt=qt: a(MF16, V(Lr(sb, qt), 4), V(R_ONE, 4), V(R_P[sb] + 4 * qt, 4), V(Lr(sb ^ 1, qt), 4))))
        ops.append((43.5, lambda: a("v_cmp_nge_f32", S(50, 2), "s42", V(Lr(sb, 0)))))
        ops.append((45.5, lambda: a("v_cmp_nge_f32", "vcc", "s42", V(Lr(sb, 1)))))
        ops.append((46.1, lambda: a("s_or_b64", "vcc", "vcc", S(50, 2))))
        ops.sort(key=lambda x: x[0])
        return ops
    stubs = []
    def check(sb):
        ret = a.newlabel("ret"); stub = a.newlabel("stub")
        stubs.append((stub, ret, sb))
        a("s_cbranch_vccnz", stub)
        a.label(ret)
    def rowmax(sb):
        for qt in range(2):
            m = R_X + 2 + qt; s0 = Sn(sb, 0, qt); s1 = Sn(sb, 1, qt)
            a("v_max3_f32", V(m), V(s0), V(s0 + 1), V(s0 + 2))
            a("v_max3_f32", V(m), V(m), V(s0 + 3), V(s1))
            a("v_max3_f32", V(m), V(m), V(s1 + 1), V(s1 + 2))
            a("v_max_f32", V(m), V(m), V(s1 + 3))
        for op in ("v_permlane32_swap_b32", "v_permlane16_swap_b32"):
            for qt in range(2): a("v_mov_b32", V(R_X + 4 + qt), V(R_X + 2 + qt))
            for qt in range(2):
                a(op, V(R_X + 2 + qt), V(R_X + 4 + qt))
                a("v_max_f32", V(R_X + 2 + qt), V(R_X + 2 + qt), V(R_X + 4 + qt))
    def mf(q, tau, sbX, sbY):
        n = tau % 16; i, qt = n // 2, n % 2
        q.need(F(i))
        if tau < 16:
            kt2, T = i // 4, i % 4
            d = V(Sn(sbX, kt2, qt), 4)
            a(MF16, d, F(i), Q(qt, T), V(Cn(kt2, qt), 4) if T == 0 else d)
        else:
            a(MF16, O(i, qt), F(i), V(R_P[sbY] + 4 * qt, 4), O(i, qt))
    nomask = a.newlabel("nomask0")
    a("s_cmp_lg_u32", "s40", 0)
    a("s_cbranch_scc1", nomask)
    apply_mask()
    a.label(nomask)
    st_.stamp()
    q = LdsQ(a)
    for i in range(8): q.issue("ds_read_b128", F(i), V(R_X), mods=f"offset:{i*1024}")
    q.drain()
    a("s_barrier")
    ne2 = a.newlabel("noepw")
    a("s_cmp_lg_u32", "s3", 4)
    a("s_cbranch_scc1", ne2)
    a("v_mov_b32", V(8), k4.EPL)
    a("ds_write_b32", V(8), V(222))
    a("v_mov_b32", V(10), 0)
    a("ds_write_b32", V(8), V(10), mods="offset:4")
    a("ds_write_b32", V(8), V(10), mods="offset:8")
    a("s_waitcnt", "lgkmcnt(0)")
    a.label(ne2)
    skp2 = a.newlabel("skip_r1")
    a("s_cmp_eq_u32", "s14", 0)
    a("s_cbranch_scc1", skp2)
    for f in adma(): f()
    a.label(skp2)
    for tau in range(16):
        mf(q, tau, 0, None)
        if tau % 2 == 1: rdK(q, tau // 2, 0)()
    rowmax(0)
    for qt in range(2):
        for kt2 in range(2):
            for r_ in range(4):
                a("v_sub_f32", V(Sn(0, kt2, qt) + r_), V(Sn(0, kt2, qt) + r_), V(R_X + 2 + qt))
                a("v_sub_f32", V(Cn(kt2, qt) + r_), 0, V(R_X + 2 + qt))
    for t, f in sm(0):
        if t < 32: f()
    q.need(F(0), F(1), F(2), F(3))
    a("s_cmp_eq_u32", "s14", 0)
    a("s_cselect_b32", "s28", 0, 1)
    wl = a.newlabel("w8"); wl2 = a.newlabel("w8b")
    a("s_cbranch_scc0", wl)
    a("s_waitcnt", "vmcnt(0)")
    a("s_branch", wl2)
    a.label(wl)
    a("s_waitcnt", "vmcnt(9)")
    a.label(wl2)
    a("s_mov_b32", "s34", "s40")
    entry = list(q.q)
    tails = [a.newlabel(f"tail{p}") for p in range(4)]
    specials = []
    lblB = a.newlabel("loopB")
    a("s_cmp_eq_u32", "s14", 0)
    a("s_cbranch_scc0", lblB)
    PRI = opt(abl, "pri", 5)
    for grp, fast in ((0, 1), (0, 0), (1, 1), (1, 0)):
        if grp == 1 and fast: a.label(lblB)
        if fast:
            slowl = a.newlabel("attn_slow")
            a("s_cmp_lt_u32", "s34", 5)
            a("s_cbranch_scc1", slowl)
            loop = a.label(a.newlabel("attn_loop"))
        else:
            loop = a.label(slowl)
        q = LdsQ(a, entry)
        for p in range(4):
            sb = p & 1
            if not fast:
                sp = a.newlabel("special"); back = a.newlabel("back")
                specials.append((sp, back, p, grp))
                a("s_cmp_le_u32", "s34", 1)
                a("s_cbranch_scc1", sp)
                a.label(back)
            assert q.q == entry
            ev = []
            W = lambda *fr: (lambda: q.need(*[F(k) for k in fr]))
            pn = (p + 1) % 4
            ev += [(2 * i + 1.2, rdV(q, i, p)) for i in range(8)]
            ev += [(6.1, W(4, 5, 6, 7)), (12.1, W(0, 1, 2, 3)), (30.1, W(0, 1, 2, 3))]
            if p % 2 == 0:
                ev += [(17 + 2 * i + 0.2, rdK(q, i, pn)) for i in range(8)]
                ev += [(22.1, W(4, 5, 6, 7))]
            else:
                def hook():
                    q.drain()
                    if grp == 1:
                        a("s_waitcnt", "vmcnt(19)")
                        a("s_barrier", ann={"abar": 1})
                        a("s_add_u32", "s39", "s39", 1)
                    elif p == 1 and not fast:
                        nb = a.newlabel("nobar")
                        a("s_cmp_lt_u32", "s34", 2)
                        a("s_cbranch_scc1", nb)
                        a("s_barrier")
                        a.label(nb)
                    else:
                        a("s_barrier")
                    if p == 3: a("v_xor_b32", V(vKV), 65536, V(vKV))
                ev += [(22.1, hook)]
                ev += [(t, rdK(q, i, pn)) for i, t in enumerate((22.2, 23.2, 23.3, 25.2, 25.3, 27.2, 29.2, 31.2))]
                if grp == 1:
                    for i, f in enumerate(adma()): ev.append((24.05 + i, f))
            for t, f in sm(sb):
                if t >= 32: ev.append((t - 32, f))
            for t, f in sm(sb ^ 1):
                if t < 32: ev.append((t, f))
            ev.append((CHK - 32 + 0.5, lambda: check(sb)))
            if not fast: ev.append((8.1, lambda: a("s_sub_u32", "s34", "s34", 1)))
            elif p == 0: ev.append((8.1, lambda: a("s_sub_u32", "s34", "s34", 4)))
            if grp == 1 and PRI:
                if p == 0: ev.append((0.1, lambda: a("s_setprio", 1)))
                if PRI // 2 == p: ev.append((0.1 if PRI % 2 == 0 else 16.1, lambda: a("s_setprio", 0)))
            ev.sort(key=lambda x: x[0])
            k = 0
            for tau in range(32):
                mf(q, tau, sb ^ 1, sb)
                while k < len(ev) and ev[k][0] < tau + 1:
                    ev[k][1](); k += 1
            assert k == len(ev)
        assert q.q == entry, (q.q, entry)
        if fast:
            a("s_cmp_ge_u32", "s34", 5)
            a("s_cbranch_scc1", loop)
        else:
            a("s_branch", loop)
    for sp, back, p, grp in specials:
        a.label(sp)
        a("s_cmp_eq_u32", "s34", 0)
        a("s_cbranch_scc1", tails[p])
        apply_mask()
        a("s_branch", back)
    epi = a.newlabel("epi")
    for p in range(4):
        a.label(tails[p])
        sb = p & 1
        q = LdsQ(a, entry)
        for i in range(8): rdV(q, i, p)()
        for t, f in sm(sb):
            if t >= 32: f()
        check(sb)
        for tau in range(16, 32): mf(q, tau, None, sb)
        for qt in range(2): a("v_mov_b32", V(R_L[0] + qt), V(Lr(sb, qt)))
        a("s_branch", epi)
    rare_lbl = [a.newlabel("rare0"), a.newlabel("rare1")]
    for k, (stub, ret, sb) in enumerate(stubs):
        a.label(stub)
        a("s_mov_b32", "s48", k)
        a("s_branch", rare_lbl[sb])
    for sb in range(2):
        a.label(rare_lbl[sb])
        a("s_nop", 7)
        rowmax(sb)
        for qt in range(2):
            m = R_X + 2 + qt; f_ = R_X + 4 + qt
            a("v_max_f32", V(f_), 1.0, V(Lr(sb ^ 1, qt)))
            a("v_log_f32", V(f_), V(f_))
            a("v_max_f32", V(m), V(f_), V(m))
            a("v_sub_f32", V(f_), 0, V(m))
            a("v_exp_f32", V(f_), V(f_))
        for qt in range(2):
            m = R_X + 2 + qt; f_ = R_X + 4 + qt
            for dt in range(8):
                for r_ in range(4): a("v_mul_f32", V(On(dt, qt) + r_), V(f_), V(On(dt, qt) + r_))
            for r_ in range(4): a("v_mul_f32", V(Lr(sb ^ 1, qt) + r_), V(f_), V(Lr(sb ^ 1, qt) + r_))
            for kt2 in range(2):
                for r_ in range(4):
                    for reg in (Sn(sb, kt2, qt), Sn(sb ^ 1, kt2, qt), Cn(kt2, qt)):
                        a("v_sub_f32", V(reg + r_), V(reg + r_), V(m))
        for t, f in sm(sb):
            if t < 43: f()
        for t, f in sm(sb ^ 1):
            if t < CHK - 32 + 0.5: f()
        a("s_nop", 7)
        mine = [(k, ret) for k, (stub, ret, s2) in enumerate(stubs) if s2 == sb]
        for k, ret in mine[:-1]:
            a("s_cmp_eq_u32", "s48", k)
            a("s_cbranch_scc1", ret)
        a("s_branch", mine[-1][1])
    a.label(epi)
    a("s_setprio", 0)
    ep2 = a.newlabel("epi_b")
    a("s_cmp_lg_u32", "s14", 0)
    a("s_cbranch_scc1", ep2)
    a("s_waitcnt", "vmcnt(0)")
    a.label(ep2)
    L = R_L[0]
    for op in (() if MSUM else ("v_permlane32_swap_b32", "v_permlane16_swap_b32")):
        for qt in range(2): a("v_mov_b32", V(R_X + 4 + qt), V(L + qt))
        for qt in range(2):
            a(op, V(L + qt), V(R_X + 4 + qt))
            a("v_add_f32", V(L + qt), V(L + qt), V(R_X + 4 + qt))
    for qt in range(2): a("v_rcp_f32", V(L + qt), V(L + qt))
    a("s_mov_b32", "s28", 0)
    a("s_mov_b32", "s29", 32 * 4096)
    n = 0
    for qt in range(2):
        for T in range(4):
            P = R_F + 4 * (n % 8); n += 1
            for hf in range(2):
                b = On(2 * T + hf, qt)
                for r_ in range(4): a("v_mul_f32", V(b + r_), V(L + qt), V(b + r_))
                a("v_cvt_pk_bf16_f32", V(P + 2 * hf), V(b), V(b + 1))
                a("v_cvt_pk_bf16_f32", V(P + 2 * hf + 1), V(b + 2), V(b + 3))
            a("buffer_store_dwordx4", V(P, 4), V(vST), S(SR_CTX, 4), "s28" if qt == 0 else "s29", mods=f"offen offset:{T*1024}" + " sc1")
    fin = a.newlabel("fin")
    a("s_cmp_eq_u32", "s14", 0)
    a("s_cbranch_scc1", fin)
    a("s_mov_b32", "s41", 0)
    for r_ in (208, 209, 210, 211, 212): a("v_mov_b32", V(r_), 0)
    a("s_mov_b64", S(50, 2), S(SR_KV, 2))
    a("s_mul_i32", "s19", "s12", 5)
    a("s_add_u32", "s19", "s19", "s13")
    a("s_sub_u32", "s19", "s19", 1)
    a("s_lshl_b32", "s19", "s19", 2)
    a("s_add_u32", "s19", "s19", "s15")
    a("s_lshl_b32", "s16", "s12", 3); a("s_and_b32", "s28", "s13", 4)
    a("s_add_u32", "s16", "s16", "s28"); a("s_add_u32", "s16", "s16", "s15")
    a("s_mul_i32", "s22", "s15", 6144)
    a("s_add_u32", "s22", "s22", XCH)
    a("v_mov_b32", V(9), k4.EPL)
    a("ds_read_b32", V(13), V(9))
    a("s_load_dwordx2", S(8, 2), S(0, 2), KA["wo"])
    a("s_load_dwordx4", S(4, 4), S(0, 2), KA["bk"])
    a("s_load_dwordx2", S(10, 2), S(0, 2), KA["shk"])
    a("s_load_dwordx2", S(36, 2), S(0, 2), KA["gw"])
    a("v_mov_b32", V(12), 0)
    a("s_waitcnt", "lgkmcnt(0)")
    a("s_mov_b32", "s23", 0)
    a("s_mov_b32", "s20", 0)
    a("s_lshl_b32", "s21", "s13", 1)
    a("s_sub_u32", "s21", opt(abl, "ps", 16), "s21")
    def wl2():
        srd(a, 96, 8, SZ["wo"])
        a("s_lshr_b32", "s28", "s2", 3); a("s_lshl_b32", "s28", "s28", 7); a("s_lshl_b32", "s29", "s15", 5); a("s_add_u32", "s28", "s28", "s29")
        a("v_lshrrev_b32", V(248), 1, V(vLANE)); a("v_add_u32", V(248), "s28", V(248)); a("v_mul_u32_u24", V(248), 1280, V(248))
        a("v_and_b32", V(249), 1, V(vLANE)); a("v_lshl_add_u32", V(249), V(249), 7, V(248))
        a("s_and_b32", "s28", "s2", 1); a("s_mul_i32", "s28", "s28", 640)
        a("buffer_load_dword", V(250), V(249), S(96, 4), "s28", mods="offen")
        a("buffer_load_dword", V(251), V(249), S(96, 4), "s28", mods="offen offset:256")
        a("buffer_load_dword", V(252), V(248), S(96, 4), "s28", mods="offen offset:512")
    ld3 = a.newlabel("loader3"); ld2 = a.newlabel("loader2"); lde = a.newlabel("loader_early")
    ld = a.label(a.newlabel("loader"))
    a("s_cmp_lt_u32", "s41", 3)
    a("s_cbranch_scc1", lde)
    a("s_waitcnt", "vmcnt(16)")
    a.label(lde)
    a("s_waitcnt", "vmcnt(24)")
    a.label(ld2)
    a("s_add_u32", "s39", "s39", 1)
    a("s_cmp_lt_u32", "s39", "s38")
    a("s_cbranch_scc0", ld3)
    a("s_barrier", ann={"abar": 1})
    for f in adma(gate=True): f()
    a("s_add_u32", "s41", "s41", 1)
    a("s_cmp_lt_u32", "s39", "s21")
    a("s_cbranch_scc1", ld)
    a("s_add_u32", "s20", "s20", 1)
    if "wl2" in abl:
        nw = a.newlabel("nowl2")
        a("s_cmp_lg_u32", "s23", 0)
        a("s_cbranch_scc1", nw)
        a("s_add_u32", "s28", "s39", opt(abl, "wr", 5))
        a("s_cmp_lt_u32", "s28", "s38")
        a("s_cbranch_scc1", nw)
        a("s_mov_b32", "s23", 1)
        wl2()
        a.label(nw)
    UT = UtTask(a, "s19", vLANE, 88); GT = GateTask(a, "s16", vLANE, 88)
    def flag(off_fn):
        off_fn()
        a("s_mov_b64", "exec", 1)
        a("buffer_store_dword", V(13), V(12), S(SR_FL, 4), "s28", mods="offen sc1")
        a("s_mov_b64", "exec", -1)
    def fu():
        UT.ids()
        a("s_lshl_b32", "s28", S(UT.st + 1), 8); a("s_lshl_b32", "s29", S(UT.st), 2); a("s_add_u32", "s28", "s28", "s29"); a("s_add_u32", "s28", "s28", k4.FL_P)
    def fg():
        a("s_lshl_b32", "s28", "s16", 2); a("s_add_u32", "s28", "s28", k4.FL_G)
    mk = lambda d, pair, nm: srd(a, d, pair, SZ[nm])
    def wtouch():
        mk(96, 8, "wo")
        a("s_mul_i32", "s28", "s12", 6); a("s_add_u32", "s28", "s28", "s13"); a("s_lshl_b32", "s28", "s28", 2); a("s_add_u32", "s28", "s28", "s15")
        a("s_lshl_b32", "s28", "s28", 13)
        a("v_lshlrev_b32", V(200), 7, V(vLANE))
        a("buffer_load_dword", V(201), V(200), S(96, 4), "s28", mods="offen")
    planP = [(lambda: UT.loads(mk, 96), 15), (None, 0),
             (lambda: (a("s_waitcnt", "vmcnt(16)"), UT.compute(None, "s22", part=0)), 0),
             (lambda: UT.compute(None, "s22", part=1), 0),
             (lambda: UT.compute(None, "s22", part=2), 0),
             (lambda: (UT.compute(None, "s22", part=3), srd(a, 96, 50, 640 * 4096, off=WS_UT), UT.compute(96, "s22", part=4)), 4),
             (None, 0), (None, 0),
             (lambda: (a("s_waitcnt", "vmcnt(24)"), flag(fu), a("s_mov_b32", "s13", 7)), 1)]
    planG = [(lambda: (mk(96, 36, "gw"), GT.loads(SR_X, 96)), 15),
             (None, 0),
             (lambda: (a("s_waitcnt", "vmcnt(16)"), srd(a, 96, 50, 2048 * 4, off=WS_G), GT.compute(96)), 2)]
    if "pl1" in abl: planP = planP[:1] + [(None, 0)] * 2
    if "pl2" in abl: planP = planP[:5]
    if "pl3" in abl: planP = [(None, 0), (None, 0)] + planP[2:5]
    lg_ = a.newlabel("plan_gate")
    if "nopl" in abl or "tailp" in abl: a("s_branch", ld)
    a("s_cmp_eq_u32", "s13", 7)
    a("s_cbranch_scc1", ld)
    a("s_sub_u32", "s28", "s13", 1)
    a("s_cmp_gt_u32", "s28", 4)
    a("s_cbranch_scc1", lg_)
    for plan in (planP, planG):
        if plan is planG: a.label(lg_)
        lbls = [a.newlabel(f"pstep{k}") for k in range(len(plan))]
        for k in range(len(plan)):
            a("s_cmp_eq_u32", "s20", k + 1)
            a("s_cbranch_scc1", lbls[k])
        a("s_branch", ld)
        for k, (fn, n) in enumerate(plan):
            a.label(lbls[k])
            if fn and "nopp" not in abl: a("s_setprio", 3)
            if fn: fn()
            if fn and "nopp" not in abl: a("s_setprio", 0)
            prev = plan[k - 1][1] if k else 0
            pprev = plan[k - 2][1] if k > 1 else 0
            extra = 0
            a("s_waitcnt", f"vmcnt({min(55, 16 + n + prev + pprev + extra)})")
            a("s_branch", ld2)
    a.label(ld3)
    a("s_waitcnt", "vmcnt(0)")
    a("s_barrier")
    if "tailp" in abl:
        tg = a.newlabel("tp_gate"); te = a.newlabel("tp_end")
        a("s_lshl_b32", "s19", "s15", 8)
        a("s_add_u32", "s19", "s19", "s2")
        a("s_mov_b32", "s16", "s2")
        a("s_cmp_eq_u32", "s15", 3)
        a("s_cbranch_scc1", tg)
        a("s_cmp_ge_u32", "s19", 640)
        a("s_cbranch_scc1", te)
        UT.loads(mk, 96)
        a("s_waitcnt", "vmcnt(0)")
        srd(a, 96, 50, 640 * 4096, off=WS_UT)
        UT.compute(96, "s22")
        a("s_waitcnt", "vmcnt(0)")
        flag(fu)
        a("s_branch", te)
        a.label(tg)
        mk(96, 36, "gw"); GT.loads(SR_X, 96)
        a("s_waitcnt", "vmcnt(0)")
        srd(a, 96, 50, 2048 * 4, off=WS_G); GT.compute(96)
        a("s_waitcnt", "vmcnt(0)")
        flag(fg)
        a.label(te)
        a("s_mov_b32", "s13", 7)
    ngf = a.newlabel("nogflag"); gfl = a.newlabel("gflag")
    a("s_cmp_eq_u32", "s13", 7)
    a("s_cbranch_scc1", ngf)
    a("s_sub_u32", "s28", "s13", 1)
    a("s_cmp_gt_u32", "s28", 4)
    a("s_cbranch_scc1", gfl)
    flag(fu)
    a("s_branch", ngf)
    a.label(gfl)
    flag(fg)
    a.label(ngf)
    if "wl2" in abl:
        nw2 = a.newlabel("nowl2b")
        a("s_cmp_lg_u32", "s23", 0)
        a("s_cbranch_scc1", nw2)
        wl2()
        a("s_waitcnt", "vmcnt(0)")
        a.label(nw2)
    a.label(fin)
    st_.stamp()
    if "nop4" not in abl: k4.phase4(a, abl, st_, SR_FL, done)
    st_.stamp()
    st_.stamp(real=True)
    st_.flush("s3", wg=opt(abl, "wg", 0))
    a.label(done)
    a("s_endpgm")
    a.raw(k4.table_text(abl))
    pol_rare = lambda i, c: (i.op == "s_cbranch_vccnz" and c % 3 == 1) or (i.op in ("s_cbranch_vccz", "s_cbranch_scc1") and c == 2)
    pol_norm = lambda i, c: (i.op == "s_cbranch_vccz") or (i.op == "s_cbranch_scc1")
    return dict(name=name, vgpr=NV, grid=256, block=512, lds=160 * 1024, waves=8, check_wgs=[0, 8, 24, 32, 40, 48, 56, 255], policies=[pol_norm, pol_rare], barinfo=True)
```

```python
from common import *
from side import *
def opt(abl, key, default):
    for x in abl:
        if x.startswith(key) and x[len(key):].isdigit(): return int(x[len(key):])
    return default

EPL = 160 * 1024 - 64
FL_P = 4096
FL_Y2 = 10240
FL_C = 16384
FL_G = 28672

def tile_table():
    tab = [None] * 256
    for half in range(2):
        tiles = []
        for c in range(5):
            cbk = half * 5 + c
            if c < 3: st = [(min(5 * k, 123), 5) for k in range(26)]
            else: st = [(6 * k, 6) for k in range(3)] + [(18 + 5 * k, 5) for k in range(22)]
            tiles += [(q, n, cbk) for q, n in st]
        tiles.sort(key=lambda t: (t[0], t[2]))
        assert len(tiles) == 128
        for qd in range(4):
            mine = tiles[16 * qd:16 * qd + 16] + tiles[64 + 16 * qd:64 + 16 * qd + 16]
            xcd = 2 * qd + half
            for idx, t in enumerate(mine): tab[idx * 8 + xcd] = t
    cover = set()
    for q, n, c in tab:
        for k in range(n): cover.add((q + k, c))
    assert len(cover) == 1280
    return tab
TAB = tile_table()
def pack(t): return t[0] | (t[1] << 8) | (t[2] << 16)

def phase4(a, abl, st_, SR_FL, done):
    tabl = "p4_table"
    a("s_load_dwordx2", S(4, 2), S(0, 2), KA["x"])
    a("s_load_dwordx2", S(6, 2), S(0, 2), KA["ws"])
    a("s_load_dwordx2", S(8, 2), S(0, 2), KA["out"])
    a("s_load_dwordx2", S(10, 2), S(0, 2), KA["wo"])
    a("s_load_dwordx4", S(48, 4), S(0, 2), KA["ssmk"])
    a("s_getpc_b64", S(28, 2))
    pc = a.label(a.newlabel("p4_pc"))
    a("s_add_u32", "s28", "s28", f"{tabl}-{pc}")
    a("s_addc_u32", "s29", "s29", 0)
    a("s_lshl_b32", "s30", "s2", 2)
    a("s_load_dword", "s13", S(28, 2), "s30", ann={"val": lambda c: pack(TAB[c["wg"]])})
    a("v_mov_b32", "v14", EPL)
    a("ds_read_b32", "v13", "v14")
    a("v_lshlrev_b32", "v3", 4, "v2")
    a("s_lshl_b32", "s41", "s40", 7)
    a("s_lshl_b32", "s31", "s12", 2)
    a("s_add_u32", "s41", "s41", "s31")
    a("s_add_u32", "s41", "s41", FL_C)
    a("s_and_b32", "s58", "s38", 2)
    a("s_lshl_b32", "s58", "s58", 15)
    a("s_xor_b32", "s57", "s58", 65536)
    a("v_mov_b32", "v12", 0)
    def sig(val, soff):
        a("s_mov_b64", "exec", 1)
        a("buffer_store_dword", val, "v12", S(SR_FL, 4), soff, mods="offen sc1")
        a("s_mov_b64", "exec", -1)
    def ldsinc(off):
        a("v_mov_b32", "v1", 1)
        a("s_mov_b64", "exec", 1)
        a("ds_add_u32", "v14", "v1", mods=f"offset:{off}")
        a("s_mov_b64", "exec", -1)
    def ldswait(off):
        a("s_mov_b32", "s31", 0)
        gw = a.label(a.newlabel("p4_gw")); gok = a.newlabel("p4_gok")
        a("ds_read_b32", "v11", "v14", mods=f"offset:{off}")
        a("s_waitcnt", "lgkmcnt(0)")
        a("v_readfirstlane_b32", "s28", "v11", ann={"val": lambda c: 4})
        a("s_cmp_ge_u32", "s28", 4)
        a("s_cbranch_scc1", gok)
        a("s_sleep", 2)
        a("s_add_u32", "s31", "s31", 1)
        a("s_cmp_lt_u32", "s31", 1 << 19)
        a("s_cbranch_scc1", gw)
        a.label(gok)
    a("s_waitcnt", "lgkmcnt(0)")
    conv = a.newlabel("p4_conv")
    srd(a, 36, 6, 640 * 4096, off=WS_Y2T)
    a("s_cmp_ge_u32", "s3", 4); a("s_cbranch_scc1", conv)
    ldsinc(8)
    a("s_setprio", opt(abl, "gp", 2))
    a("s_and_b32", "s14", "s13", 255)
    a("s_lshr_b32", "s15", "s13", 16)
    a("s_bfe_u32", "s28", "s13", "0x80008")
    a("s_add_u32", "s28", "s28", "s14")
    a("s_sub_u32", "s28", "s28", 1)
    a("s_lshr_b32", "s28", "s28", 1)
    a("s_lshr_b32", "s29", "s14", 1)
    a("v_lshrrev_b32", "v15", 3, "v2")
    a("v_add_u32", "v15", "s29", "v15")
    a("v_min_u32", "v15", "s28", "v15")
    a("v_lshlrev_b32", "v15", 7, "v15")
    a("v_and_b32", "v1", 7, "v2")
    a("v_lshl_add_u32", "v15", "v1", 2, "v15")
    a("s_lshl_b32", "s42", "s3", 5)
    a("s_add_u32", "s42", "s42", FL_C)
    def fpoll(): a("buffer_load_dword", "v10", "v15", S(SR_FL, 4), "s42", mods="offen sc1")
    fpoll()
    srd(a, 16, 6, 2048 * 4096 * 2, off=WS_CTX)
    srd(a, 20, 10, SZ["wo"])
    srd(a, 24, 4, SZ["x"])
    srd(a, 60, 8, SZ["out"])
    srd(a, 44, 6, 2048 * 4, off=WS_G)
    VC = 4; VWs = 5; WA = [6, 7, 8, 9]
    a("s_lshl_b32", "s28", "s3", 15)
    a("s_lshl_b32", "s29", "s14", 17)
    a("s_add_u32", "s29", "s29", "s28")
    a("v_add_u32", V(VC), "s29", "v3")
    a("v_lshrrev_b32", V(VWs), 3, "v2")
    a("s_lshl_b32", "s28", "s3", 10)
    a("v_add_u32", V(VWs), "s28", V(VWs))
    a("v_mul_u32_u24", V(VWs), 1280, V(VWs))
    a("v_lshrrev_b32", "v1", 4, "v2"); a("v_lshlrev_b32", "v1", 1, "v1")
    a("v_and_b32", "v11", 7, "v2"); a("v_xor_b32", "v1", "v1", "v11")
    a("v_lshl_add_u32", V(VWs), "v1", 4, V(VWs))
    a("s_lshl_b32", "s28", "s15", 7)
    a("v_add_u32", V(VWs), "s28", V(VWs))
    a("s_lshl_b32", "s59", "s3", 14)
    a("s_add_u32", "s59", "s59", "s58")
    a("v_lshrrev_b32", "v1", 2, "v2")
    a("v_lshlrev_b32", "v11", 7, "v1")
    a("v_and_b32", V(WA[0]), 3, "v2")
    a("v_lshl_add_u32", "v11", V(WA[0]), 3, "v11")
    a("v_add_u32", "v11", "s59", "v11")
    a("v_bfe_u32", "v1", "v2", 3, 2)
    for mt in range(4):
        a("v_xor_b32", V(WA[mt]), mt, "v1")
        a("v_lshl_add_u32", V(WA[mt]), V(WA[mt]), 5, "v11")
    vt, vm, vx, vy, vf = 240, 241, 242, 243, 244
    a("v_and_b32", V(vt), 15, "v2")
    a("s_lshl_b32", "s28", "s14", 4)
    a("v_add_u32", V(vt), "s28", V(vt))
    a("v_lshrrev_b32", V(vm), 4, "v2")
    a("v_lshlrev_b32", V(vm), 2, V(vm))
    a("s_lshl_b32", "s28", "s15", 6)
    a("s_lshl_b32", "s29", "s3", 4)
    a("s_add_u32", "s28", "s28", "s29")
    a("v_add_u32", V(vm), "s28", V(vm))
    a("v_mul_u32_u24", V(vx), 1280, V(vt))
    a("v_lshl_add_u32", V(vx), V(vm), 1, V(vx))
    a("v_lshlrev_b32", V(vy), 12, V(vm))
    a("v_lshl_add_u32", V(vy), V(vt), 1, V(vy))
    a("v_lshlrev_b32", V(vt), 2, V(vt))
    a("s_lshl_b32", "s28", "s28", 2)
    a("s_add_u32", "s28", "s28", FL_Y2)
    a("v_lshlrev_b32", V(vf), 2, "v2")
    a("v_add_u32", V(vf), "s28", V(vf))
    a("s_bfe_u32", "s28", "s13", "0x80008")
    a("s_add_u32", "s28", "s28", "s14")
    a("s_lshl_b32", "s28", "s28", 1)
    a("s_sub_u32", "s28", "s28", 1)
    a("s_lshl_b32", "s29", "s14", 1)
    a("s_sub_u32", "s29", "s29", 16)
    a("v_add_u32", "v1", "s29", "v2")
    a("v_min_u32", "v1", "s28", "v1")
    a("v_lshlrev_b32", "v1", 2, "v1")
    a("v_add_u32", "v1", FL_G, "v1")
    a("v_cmp_gt_u32", "vcc", 16, "v2")
    a("v_cndmask_b32", V(vf), "v1", V(vf), "vcc")
    def wdma(step_imm, slot):
        L = []
        for i in range(4):
            def f(i=i):
                if i == 0: a("s_add_u32", "m0", "s59", slot * 4096)
                a("s_add_u32", "s35", "s33", step_imm * 32 * 1280 + i * 8 * 1280 - i * 1024)
                a("buffer_load_dwordx4", V(VWs), S(20, 4), "s35", mods=f"offen offset:{i*1024} lds")
            L.append(f)
        return L
    a("s_mov_b32", "s33", 0)
    a("s_mov_b32", "s30", 0)
    if "sigf" in abl:
        a("s_waitcnt", "vmcnt(0)")
        sig("v13", "s41")
        ldsinc(4)
    ldswait(8)
    for u in range(4):
        for f in wdma(u, u): f()
    if "sigf" not in abl:
        a("s_waitcnt", "vmcnt(16)")
        sig("v13", "s41")
        ldsinc(4)
    st_.stamp()
    a("s_mov_b32", "s31", 0)
    cp = a.label(a.newlabel("p4_cpoll")); cok = a.newlabel("p4_cok")
    a("v_cmp_ne_u32", "vcc", "v10", "v13")
    a("s_cbranch_vccz", cok)
    a("s_sleep", opt(abl, "csl", 12))
    fpoll()
    a("s_waitcnt", "vmcnt(0)")
    a("s_add_u32", "s31", "s31", 1)
    a("s_cmp_lt_u32", "s31", 1 << 19)
    a("s_cbranch_scc1", cp)
    a.label(cok)
    if "nogate" not in abl: ldswait(4)
    st_.stamp()
    fin = a.newlabel("p4_fin")
    l6 = a.newlabel("p4_nq6")
    a("s_bitcmp1_b32", "s13", 9)
    a("s_cbranch_scc1", l6)
    n_st = st_.n
    for nq in (5, 6):
        if nq == 6: a.label(l6)
        st_.n = n_st
        ACC = 16; CF = ACC + 16 * nq; WF = CF + 16 * nq
        assert WF + 32 <= 240
        cf = lambda u, qt: V(CF + 4 * (u * nq + qt), 4)
        wf = lambda s, mt: V(WF + 16 * s + 4 * mt, 4)
        accn = lambda mt, qt: ACC + 4 * (mt * nq + qt)
        for qt in range(nq): a("s_mov_b32", S(60 - 8 + 0) if False else S(96 + qt if qt < 4 else 50 + qt), qt * 131072)
        SO = [96, 97, 98, 99, 54, 55]
        def ldc(u, qt): a("buffer_load_dwordx4", cf(u, qt), V(VC), S(16, 4), S(SO[qt]), mods=f"offen offset:{u*1024} sc1")
        q = LdsQ(a)
        def rdw(u, mt):
            for t in range(2):
                q.issue("ds_read_b64_tr_b16", V(WF + 16 * (u % 2) + 4 * mt + 2 * t, 2), V(WA[mt]), mods=f"offset:{u*4096 + t*2048}")
        for u in range(4):
            for qt in range(nq): ldc(u, qt)
        a("s_waitcnt", f"vmcnt({4*nq})")
        for mt in range(4): rdw(0, mt)
        a("s_mov_b32", "s31", 0)
        NO = nq + 4
        EARLY = (nq == 5 and "early" in abl)
        if EARLY: XE = 246; YE = 208; GE = 228; B = YE; T = 234; G1 = 236
        else: XE = CF; YE = CF + 2 * nq; GE = CF + 6 * nq; T = WF; G1 = WF + 16; B = CF + 8 * nq
        NE = 6 * nq
        slow = a.newlabel("p4_slowpoll"); back = a.newlabel("p4_pollok")
        def eloads():
            a("v_cmp_ne_u32", "vcc", "v10", "v13")
            a("s_cbranch_vccnz", slow)
            a.label(back)
            for qt in range(nq):
                a("s_mov_b32", "s28", qt * 16 * 1280)
                a("buffer_load_dwordx2", V(XE + 2 * qt, 2), V(vx), S(24, 4), "s28", mods="offen")
                a("buffer_load_dword", V(GE + qt), V(vt), S(44, 4), 0, mods=f"offen offset:{qt*64} sc1")
            for r_ in range(4):
                a("s_mov_b32", "s28", r_ * 4096)
                for qt in range(nq):
                    a("buffer_load_ushort", V(YE + 4 * qt + r_), V(vy), S(36, 4), "s28", mods=f"offen offset:{qt*32} sc1")
        def bpart(qt):
            t = B + 4 * qt; u_ = T + 4 if EARLY else t
            a("v_sub_f32", V(G1), 1.0, V(GE + qt))
            rnd2(a, T, G1, T + 1)
            for r_ in range(4):
                y = YE + 4 * qt + r_
                a("v_lshlrev_b32", V(y), 16, V(y))
                if r_ % 2 == 0: a("v_lshlrev_b32", V(G1 + 1), 16, V(XE + 2 * qt + r_ // 2))
                else: a("v_and_b32", V(G1 + 1), "0xffff0000", V(XE + 2 * qt + r_ // 2))
                a("v_mul_f32", V(t + r_), V(G1 + 1), V(y))
            rnd2(a, T, t, t + 1); rnd2(a, T + 1, t + 2, t + 3)
            for r_ in range(4): a("v_mul_f32", V(t + r_), V(t + r_), V(G1))
            rnd2(a, T, t, t + 1); rnd2(a, T + 1, t + 2, t + 3)
        qent = list(q.q)
        for mode in ("first", "loop", "pre", "last"):
            if mode == "loop": loop = a.label(a.newlabel("p4_loop"))
            if mode != "last":
                a("v_add_u32", V(VC), 4096, V(VC))
                a("s_add_u32", "s33", "s33", 128 * 1280)
            if mode == ("pre" if EARLY else "last"):
                a("buffer_load_dword", "v10", V(vf), S(SR_FL, 4), 0, mods="offen sc1")
            assert q.q == qent
            for u in range(4):
                if mode == "first": n = (3 - u) * nq + u * NO if u < 3 else nq + 2 * NO
                elif mode == "loop": n = nq + 2 * NO
                elif mode == "pre": n = nq + 2 * NO + (1 if (EARLY and u < 3) else 0)
                elif EARLY: n = [nq + 2 * NO, nq + NO + NE, nq + NE, NE][u]
                else: n = [nq + 2 * NO + 1, nq + NO + 1, nq + 1, 0][u]
                a("s_waitcnt", f"vmcnt({n})")
                if mode == "last" and u == (0 if EARLY else 3): eloads()
                q.drain()
                dm = wdma(u, u) if mode != "last" else []
                for mt in range(4):
                    for qt in range(nq):
                        d = V(accn(mt, qt), 4)
                        a(MF16, d, wf(u % 2, mt), cf(u, qt), "0" if (mode == "first" and u == 0) else d)
                        if qt == 0 and not (mode == "last" and u == 3): rdw((u + 1) % 4, mt)
                        if mt < 3 and qt in (2, 4) and dm: dm.pop(0)()
                        if mt == 3 and mode != "last": ldc(u, qt)
                assert not dm
            if mode == "loop":
                a("s_add_u32", "s31", "s31", 1)
                a("s_cmp_lt_u32", "s31", 5)
                a("s_cbranch_scc1", loop)
        st_.stamp()
        a("s_barrier")
        RW = 4 * nq * 1024
        a("s_mul_i32", "s28", "s3", RW)
        a("v_add_u32", "v8", "s28", "v3")
        for mt in range(4):
            for qt in range(nq):
                a("ds_write_b128", "v8", V(accn(mt, qt), 4), mods=f"offset:{(mt*nq+qt)*1024}")
        a("s_waitcnt", "vmcnt(0)")
        for qt in range(nq): bpart(qt)
        T = WF
        a("s_waitcnt", "lgkmcnt(0)")
        a("s_barrier")
        a("s_mul_i32", "s28", "s3", nq * 1024)
        a("v_add_u32", "v8", "s28", "v3")
        a("v_add_u32", "v9", 2 * RW, "v8")
        R = ACC
        for qt in range(nq):
            for sw in range(4):
                a("ds_read_b128", V(R + 4 * (sw * nq + qt), 4), "v8" if sw < 2 else "v9", mods=f"offset:{(sw%2)*RW + qt*1024}")
        for qt in range(nq):
            a("s_waitcnt", f"lgkmcnt({min(15, 4*(nq-1-qt))})")
            s = R + 4 * qt; t = B + 4 * qt; o = T + 2 + 2 * qt; S_ = 4 * nq
            for r_ in range(4):
                a("v_add_f32", V(s + r_), V(s + r_), V(s + S_ + r_))
                a("v_add_f32", V(s + 2 * S_ + r_), V(s + 2 * S_ + r_), V(s + 3 * S_ + r_))
                a("v_add_f32", V(s + r_), V(s + r_), V(s + 2 * S_ + r_))
            rnd2(a, T, s, s + 1); rnd2(a, T + 1, s + 2, s + 3)
            for r_ in range(4): a("v_mul_f32", V(s + r_), V(s + r_), V(GE + qt))
            rnd2(a, T, s, s + 1); rnd2(a, T + 1, s + 2, s + 3)
            for r_ in range(4): a("v_add_f32", V(s + r_), V(s + r_), V(t + r_))
            a("v_cvt_pk_bf16_f32", V(o), V(s), V(s + 1))
            a("v_cvt_pk_bf16_f32", V(o + 1), V(s + 2), V(s + 3))
            a("s_mov_b32", "s28", qt * 16 * 1280)
            a("buffer_store_dwordx2", V(o, 2), V(vx), S(60, 4), "s28", mods="offen")
        a("s_branch", fin)
        a.label(slow)
        a("s_mov_b32", "s31", 0)
        pl = a.label(a.newlabel("p4_pl"))
        a("s_sleep", 8)
        a("buffer_load_dword", "v10", V(vf), S(SR_FL, 4), 0, mods="offen sc1")
        a("s_waitcnt", "vmcnt(0)")
        a("v_cmp_ne_u32", "vcc", "v10", "v13")
        a("s_cbranch_vccz", back)
        a("s_add_u32", "s31", "s31", 1)
        a("s_cmp_lt_u32", "s31", 1 << 19)
        a("s_cbranch_scc1", pl)
        a("s_branch", back)
    n0 = st_.n
    a.label(conv)
    sig("v13", "s41")
    a("v_mov_b32", "v250", "v13")
    a("s_sub_u32", "s28", "s3", 4)
    a("s_lshl_b32", "s56", "s28", 8)
    a("s_add_u32", "s56", "s56", "s2")
    a("s_cmp_ge_u32", "s56", 640); a("s_cbranch_scc1", done)
    a("s_mul_i32", "s28", "s28", CONV_LDS)
    a("s_add_u32", "s57", "s57", "s28")
    srd(a, 24, 6, 640 * 4096, off=WS_UT)
    srd(a, 16, 48, SZ["ssmk"]); srd(a, 20, 50, SZ["ssmd"])
    def wait_ut():
        a("s_lshr_b32", "s28", "s56", 6)
        a("s_lshl_b32", "s28", "s28", 8)
        a("s_add_u32", "s28", "s28", FL_P)
        a("v_lshlrev_b32", "v252", 2, "v2")
        a("s_mov_b32", "s31", 0)
        up = a.label(a.newlabel("p4_upoll")); uok = a.newlabel("p4_uok")
        a("buffer_load_dword", "v253", "v252", S(SR_FL, 4), "s28", mods="offen sc1")
        a("s_waitcnt", "vmcnt(0)")
        a("v_cmp_ne_u32", "vcc", "v253", "v250")
        a("s_cbranch_vccz", uok)
        a("s_sleep", 16)
        a("s_add_u32", "s31", "s31", 1)
        a("s_cmp_lt_u32", "s31", 1 << 18)
        a("s_cbranch_scc1", up)
        a.label(uok)
    def cwait():
        st_.stamp()
        if "cw" in abl and not getattr(cwait, "done", False):
            cwait.done = True
            a("v_mov_b32", "v252", EPL)
            a("s_mov_b32", "s31", 0)
            gw = a.label(a.newlabel("p4_cw")); gok = a.newlabel("p4_cwok")
            a("ds_read_b32", "v253", "v252", mods="offset:8")
            a("s_waitcnt", "lgkmcnt(0)")
            a("v_readfirstlane_b32", "s28", "v253", ann={"val": lambda c: 4})
            a("s_cmp_ge_u32", "s28", 4)
            a("s_cbranch_scc1", gok)
            a("s_sleep", 4)
            a("s_add_u32", "s31", "s31", 1)
            a("s_cmp_lt_u32", "s31", 1 << 19)
            a("s_cbranch_scc1", gw)
            a.label(gok)
    st_.n = n0 - 3
    st_.stamp()
    conv_wave(a, "s56", "s57", 2, 16, 24, 20, 36, 4, 60, sfx=" sc1", mid=cwait, before_ut=wait_ut)
    a("s_waitcnt", "vmcnt(0)")
    a("s_lshl_b32", "s28", "s56", 2)
    a("s_add_u32", "s28", "s28", FL_Y2)
    a("v_mov_b32", "v12", 0)
    sig("v250", "s28")
    a.label(fin)

def table_text(abl=()):
    T = TAB
    if "sametile" in abl: T = [(5 * (w % 8), 5, w % 8) for w in range(256)]
    return ".p2align 2\np4_table:\n" + "".join(f".long {pack(t)}\n" for t in T)
```

```python
import sys, functools
from build import *
PAT = {
 "m": [[]],
 "v": [["v"]],
 "vv": [["v", "v"]],
 "vvv": [["v", "v", "v"]],
 "e": [["e"]],
 "ev": [["e", "v"]],
 "d": [["d"]],
 "dv": [["d", "v"]],
 "ev_dv": [["e", "v"], ["d", "v"]],
 "e_dv": [["e"], ["d", "v"]],
 "e_d": [["e"], ["d"]],
 "s": [["s"]],
 "ss": [["s", "s"]],
 "c": [["c"]],
 "cc": [["c", "c"]],
}
def gen(a, pats, waves, big=False, name="is_kernel"):
    kernel_begin(a, name)
    st = Stamps(a, True, base=40)
    done = a.newlabel("done")
    a("s_cmp_ge_u32", "s2", 256); a("s_cbranch_scc1", done)
    a("v_lshrrev_b32", "v1", 6, "v0")
    a("v_readfirstlane_b32", "s3", "v1", ann={"val": lambda c: c["wave"]})
    a("v_and_b32", "v2", 63, "v0"); a("v_lshlrev_b32", "v2", 4, "v2")
    for i in range(200): a("v_mov_b32", V(8 + i), 0)
    st.stamp(); st.stamp(real=True)
    for pn in pats:
        pat = PAT[pn]
        a("s_barrier")
        st.stamp()
        N = 256
        for i in range(N):
            if big: a(MF32, V(136 + 16 * (i % 4), 16), V(40, 4), V(44, 4), V(136 + 16 * (i % 4), 16))
            else: a(MF16, V(8 + 4 * (i % 8), 4), V(40, 4), V(44, 4), V(8 + 4 * (i % 8), 4))
            for k, o in enumerate(pat[i % len(pat)] * (2 if big else 1)):
                r = 50 + (i * 3 + k) % 16
                if o == "v": a("v_add_f32", V(r), "v48", V(r))
                elif o == "e": a("v_exp_f32", V(r), "v49")
                elif o == "c": a("v_cvt_pk_bf16_f32", V(r), "v48", "v49")
                elif o == "d": a("ds_read_b128", V(72 + 4 * ((i + k) % 8), 4), "v2", mods=f"offset:{(i%16)*1024}")
                elif o == "s": a("s_add_u32", "s8", "s8", 1)
                elif o == "p": a("v_pk_add_f32", V(100 + 2 * ((i + k) % 8), 2), V(48, 2), V(100 + 2 * ((i + k) % 8), 2))
                elif o == "w": a("s_waitcnt", "lgkmcnt(6)")
        a("s_waitcnt", "lgkmcnt(0)")
        a("s_nop", 15)
        st.stamp()
    st.stamp(real=True)
    st.flush("s3", wg=100)
    a.label(done)
    a("s_endpgm")
    return dict(name=name, vgpr=208, grid=256, block=64 * waves, lds=32768, waves=waves, check_wgs=[0])
for k in ["p", "dp", "pp", "pv", "dpv", "sp", "vd", "de", "ed", "dd", "dc", "cd", "wv", "vw", "ddv", "dvv", "se", "es", "we", "ew", "dw", "wd", "sss", "svv"]:
    PAT[k] = [list(k), []]
PAT["e_dp"] = [["e"], ["d", "p"]]
PAT["e_dc"] = [["e"], ["d", "c"]]
groups = [["p", "dp", "pp", "pv", "dpv", "sp"], ["e_dp", "e_dc", "e_dv", "m", "m", "m"]]
for gi, g in enumerate(groups):
    for w in (4, 8):
        for big in (0,):
            build([functools.partial(gen, pats=g, waves=w, big=big)], f"is_{gi}_{w}_{big}.s")
```
